```python
import torch

def _softmax(x, axis=-1):
    return torch.softmax(x, dim=axis)
def _gelu(x):
    return torch.nn.functional.gelu(x, approximate="tanh")
def _silu(x):
    return torch.nn.functional.silu(x)
def _sigmoid(x):
    return torch.sigmoid(x)
def _layernorm(x, axis=-1, eps=1e-5):
    m = x.mean(dim=axis, keepdim=True)
    v = x.var(dim=axis, keepdim=True, unbiased=False)
    return (x - m) / torch.sqrt(v + eps)
def _scatter_add(tgt, idx, src, axis=0):
    return tgt.clone().index_add_(axis, idx, src)
def _segment_sum(src, seg, n):
    out = torch.zeros((n,) + src.shape[1:], dtype=src.dtype)
    return out.index_add_(0, seg, src)
def _pad(x, pw):
    flat = tuple(v for pair in reversed(pw) for v in pair)
    return torch.nn.functional.pad(x, flat)

kernel_name = 'parallel_sum__mha_block__glu_gated_geglu__prompt'

def setup_inputs():

    _w = (lambda a: (lambda t: t.to(torch.bfloat16) if t.is_floating_point() else t)(torch.as_tensor(a)))
    def _A_setup():
        B, S, D, H = 1, 2048, 512, 32
        return {
            "x": _w((lambda *s: torch.randn(*s, dtype=torch.bfloat16) * 0.05)(B, S, D)),
            "wqkv": _w((lambda *s: torch.randn(*s, dtype=torch.bfloat16) * 0.05)(D, 3 * D)),
            "wo": _w((lambda *s: torch.randn(*s, dtype=torch.bfloat16) * 0.05)(D, D)),
        }
    _A_in = _A_setup()

    def _B_setup():
        B, S, Dm, Df = 1, 2048, 512, 1792
        return {
            "x": _w((lambda *s: torch.randn(*s, dtype=torch.bfloat16) * 0.05)(B, S, Dm)),
            "w_gate": _w((lambda *s: torch.randn(*s, dtype=torch.bfloat16) * 0.4)(Dm, Df) * (Dm ** -0.5)),
            "w_up": _w((lambda *s: torch.randn(*s, dtype=torch.bfloat16) * 0.4)(Dm, Df) * (Dm ** -0.5)),
            "w_down": _w((lambda *s: torch.randn(*s, dtype=torch.bfloat16) * 0.4)(Df, Dm) * (Df ** -0.5)),
        }
    _B_in = _B_setup()

    return {
        "A_x": _A_in["x"],
        "A_wqkv": _A_in["wqkv"],
        "A_wo": _A_in["wo"],
        "B_x": _B_in["x"],
        "B_w_gate": _B_in["w_gate"],
        "B_w_up": _B_in["w_up"],
        "B_w_down": _B_in["w_down"],
    }

def reference(A_x, A_wqkv, A_wo, B_x, B_w_gate, B_w_up, B_w_down):
    def _A_ref(x, wqkv, wo):
        B, S, D = x.shape
        H = 32
        Dh = D // H
        qkv = (lambda x, *d: x.permute(*d))((x @ wqkv).reshape(B, S, 3, H, Dh), 2, 0, 3, 1, 4)
        q, k, v = qkv[0], qkv[1], qkv[2]
        scores = torch.einsum("bhqd,bhkd->bhqk", q, k) * (Dh ** -0.5)
        p = _softmax(scores, axis=-1)
        o = torch.einsum("bhqk,bhkd->bhqd", p, v)
        return (lambda x, *d: x.permute(*d))(o, 0, 2, 1, 3).reshape(B, S, D) @ wo

    def _B_ref(x, w_gate, w_up, w_down):
        g = torch.einsum("bsd,df->bsf", x, w_gate)
        u = torch.einsum("bsd,df->bsf", x, w_up)
        h = _gelu(g) * u
        return torch.einsum("bsf,fd->bsd", h, w_down)

    x = A_x
    xn = _layernorm(x, axis=-1)
    return x + _A_ref(xn, A_wqkv, A_wo) + _B_ref(xn, B_w_gate, B_w_up, B_w_down)
```

```python
import re

def v(i, n=1):
    return f"v{i}" if n == 1 else f"v[{i}:{i+n-1}]"
def a(i, n=1):
    return f"a{i}" if n == 1 else f"a[{i}:{i+n-1}]"
def s(i, n=1):
    return f"s{i}" if n == 1 else f"s[{i}:{i+n-1}]"

_REG = re.compile(r"^(-?)(?:abs\()?\|?([vas])(?:(\d+)|\[(\d+):(\d+)\])\|?\)?$")
def regs_of(tok):
    tok = tok.strip()
    if tok in ("vcc",): return [("s", 106), ("s", 107)]
    if tok == "vcc_lo": return [("s", 106)]
    if tok == "vcc_hi": return [("s", 107)]
    if tok == "exec": return [("s", 126), ("s", 127)]
    if tok == "exec_lo": return [("s", 126)]
    if tok == "exec_hi": return [("s", 127)]
    if tok == "m0": return [("s", 124)]
    m = _REG.match(tok)
    if not m: return []
    k = m.group(2)
    if m.group(3) is not None: return [(k, int(m.group(3)))]
    return [(k, i) for i in range(int(m.group(4)), int(m.group(5)) + 1)]

def split_ops(rest):
    out, depth, cur = [], 0, ""
    for ch in rest:
        if ch in "[(": depth += 1
        if ch in "])": depth -= 1
        if ch == "," and depth == 0:
            out.append(cur.strip()); cur = ""
        else: cur += ch
    if cur.strip(): out.append(cur.strip())
    return out

TRANS = ("v_exp_f32", "v_log_f32", "v_rcp_f32", "v_rsq_f32", "v_sqrt_f32", "v_sin_f32", "v_cos_f32")

class Ins:
    __slots__ = ("text", "mn", "kind", "dst", "src", "srcc", "mods", "passes", "tag", "nbytes")
    def __init__(self, text, tag=None):
        self.text = text; self.tag = tag
        t = text.split(";")[0].strip()
        self.dst = []; self.src = []; self.srcc = []; self.passes = 0; self.mods = ""
        if t.endswith(":") or t.startswith(".") or not t:
            self.kind = "label" if t.endswith(":") else "dir"; self.mn = t; return
        parts = t.split(None, 1)
        mn = parts[0]; rest = parts[1] if len(parts) > 1 else ""
        self.mn = mn
        ops = split_ops(rest)
        if ops:
            toks = ops[-1].split()
            if len(toks) > 1 and not mn.startswith("s_waitcnt"):
                ops[-1] = toks[0]; self.mods = " ".join(toks[1:])
        R = [regs_of(o) for o in ops]
        base = re.sub(r"_(e32|e64|sdwa|dpp)$", "", mn)
        if base.startswith("v_mfma"):
            self.kind = "mfma"; self.dst = R[0]; self.src = R[1] + R[2]; self.srcc = R[3]
            self.passes = 8 if "32x32" in base else 4
        elif base.startswith("v_"):
            self.kind = "valu"
            if base in TRANS: self.kind = "trans"
            if base.startswith("v_dot"): self.kind = "dot"
            if base.startswith("v_cmp"):
                self.dst = R[0]; self.src = sum(R[1:], [])
                if base.startswith("v_cmpx"): self.dst = self.dst + regs_of("exec")
            elif base in ("v_add_co_u32", "v_sub_co_u32", "v_subrev_co_u32"):
                self.dst = R[0] + R[1]; self.src = sum(R[2:], [])
            elif base in ("v_addc_co_u32", "v_subb_co_u32"):
                self.dst = R[0] + R[1]; self.src = sum(R[2:], [])
            elif base.startswith("v_permlane") and "swap" in base:
                self.kind = "permswap"; self.dst = R[0] + R[1]; self.src = R[0] + R[1]
            elif base in ("v_nop",):
                pass
            else:
                self.dst = R[0]; self.src = sum(R[1:], [])
                if base.startswith(("v_fmac", "v_dot2c", "v_mac", "v_pk_fmac")) or "UNUSED_PRESERVE" in self.mods or base == "v_writelane_b32":
                    self.src = self.src + R[0]
                if base == "v_cndmask_b32" and len(ops) == 3: self.src = self.src + regs_of("vcc")
            if mn.endswith("_dpp") or "row_" in self.mods or "quad_perm" in self.mods: self.kind = "dpp"
            if base in ("v_readfirstlane_b32", "v_readlane_b32"): self.kind = "readlane"
        elif mn.startswith("ds_"):
            self.kind = "ds"
            if mn.startswith(("ds_read", "ds_bpermute", "ds_permute", "ds_swizzle")) or "_rtn" in mn:
                self.dst = R[0]; self.src = sum(R[1:], [])
            else:
                self.src = sum(R, [])
        elif mn.startswith(("buffer_", "global_")):
            self.kind = "vmem"
            islds = (" lds" in " " + self.mods) or "_lds_" in mn
            if mn in ("buffer_inv", "buffer_wbl2"):
                pass
            elif "load" in mn and not islds:
                self.dst = R[0]; self.src = sum(R[1:], [])
            elif "atomic" in mn and "sc0" in self.mods.split():
                if mn.startswith("buffer_"):
                    self.dst = R[0]; self.src = sum(R, [])
                else:
                    self.dst = R[0]; self.src = sum(R[1:], [])
            else:
                self.src = sum(R, [])
                if islds: self.src = self.src + regs_of("m0"); self.kind = "dma"
        elif mn.startswith(("s_load", "s_buffer_load", "s_memtime", "s_memrealtime")):
            self.kind = "smem"; self.dst = R[0]; self.src = sum(R[1:], [])
        elif mn.startswith("s_"):
            self.kind = "salu"
            if mn.startswith(("s_cmp", "s_cbranch", "s_branch", "s_waitcnt", "s_barrier", "s_nop", "s_endpgm", "s_setprio", "s_sleep", "s_bitcmp")):
                self.src = sum(R, [])
                if mn.startswith("s_cbranch_vcc"): self.src = regs_of("vcc")
                if mn.startswith("s_cbranch_exec"): self.src = regs_of("exec")
            else:
                self.dst = R[0]; self.src = sum(R[1:], [])
                if "saveexec" in mn: self.dst = self.dst + regs_of("exec"); self.src = self.src + regs_of("exec")
                if mn in ("s_addk_i32", "s_mulk_i32"): self.src = self.src + R[0]
        else:
            raise ValueError("unknown instruction: " + text)
    def states(self):
        if self.kind in ("label", "dir"): return 0
        if self.mn == "s_nop": return int(self.text.split(";")[0].split()[1], 0) + 1
        return 1
    def is_valu(self):
        return self.kind in ("valu", "trans", "dot", "permswap", "dpp", "readlane")

def need_states(p, c):
    n = 0
    pd, cs, cd = set(p.dst), set(c.src), set(c.dst)
    vec = lambda S: {r for r in S if r[0] in "va"}
    sc = lambda S: {r for r in S if r[0] == "s"}
    if p.is_valu():
        pv = vec(pd)
        if c.kind == "mfma" and pv & (cs | set(c.srcc)): n = max(n, 3 if p.kind == "dot" else 2)
        if p.kind == "trans" and c.is_valu() and c.kind != "trans" and pv & cs: n = max(n, 1)
        if p.kind == "trans" and c.kind in ("vmem", "ds", "dma") and pv & cs: n = max(n, 1)
        if p.kind == "dot" and (c.is_valu() or c.kind in ("vmem", "ds", "dma")) and pv & (cs | cd):
            same = c.kind == "dot" and c.mn == p.mn
            if not same: n = max(n, 3)
            else:
                ops = split_ops(c.text.split(";")[0].split(None, 1)[1])
                ab = set(regs_of(ops[1]) + regs_of(ops[2].split()[0]))
                if pv & ab: n = max(n, 3)
        if c.kind in ("permswap", "dpp") and pv & cs: n = max(n, 2)
        if c.kind == "readlane" and pv & cs: n = max(n, 1)
        ps = sc(pd)
        if ps:
            if c.kind in ("vmem", "dma") and ps & cs: n = max(n, 5)
            if c.is_valu() and ps & cs: n = max(n, 4 if c.kind == "readlane" else 2)
            if c.kind in ("salu", "smem") and ps & cs: n = max(n, 2)
            if (("s", 126) in ps) and c.kind == "mfma": n = max(n, 4)
            if (("s", 126) in ps) and c.kind in ("dpp", "permswap", "readlane"): n = max(n, 5)
        if "sdwa" in p.mn or "op_sel" in p.mods:
            if c.is_valu() and pv & (cs | cd): n = max(n, 1)
    if p.kind == "mfma":
        big = 12 if p.passes == 8 else 8
        if c.kind == "mfma":
            if pd & cs: n = max(n, big)
            cc = set(c.srcc)
            if pd & cc and not (p.dst == c.srcc and p.passes == c.passes): n = max(n, big - 2)
            if pd & cd and not (p.dst == c.dst and c.srcc == p.dst): n = max(n, big - 2)
        elif c.is_valu():
            if pd & (cs | cd): n = max(n, big)
            if set(p.srcc) & cd: n = max(n, 7 if p.passes == 8 else 3)
        elif c.kind in ("vmem", "ds", "dma"):
            if pd & (cs | cd): n = max(n, big)
            if set(p.srcc) & cd: n = max(n, 7 if p.passes == 8 else 3)
    if p.kind == "vmem" and "store" in p.mn and ("x4" in p.mn or "x3" in p.mn):
        data = set(p.src[:4]) if p.mn.startswith("buffer") else set(r for r in p.src)
        if vec(data) & cd: n = max(n, 2)
    if p.kind == "ds" and ("write_b128" in p.mn or "write_b96" in p.mn):
        if vec(set(p.src)) & cd and c.is_valu(): n = max(n, 2)
    if p.kind == "salu" and ("s", 124) in pd and c.kind == "dma": n = max(n, 1)
    return n

class Asm:
    def __init__(self):
        self.ins = []
    def __call__(self, text, tag=None):
        for line in text.split("\n"):
            line = line.strip()
            if line: self.ins.append(Ins(line, tag))
    def extend(self, lst):
        for x in lst:
            if isinstance(x, Ins): self.ins.append(x)
            else: self(x)
    def fix_hazards(self, verbose=False, loops=()):
        out = []; nins = 0
        def check(hist, c):
            need = 0; dist = 0
            for p in reversed(hist):
                if dist >= 20: break
                if p.kind not in ("label", "dir"):
                    r = need_states(p, c)
                    if r - dist > need:
                        need = r - dist; who = p
                dist += p.states()
            return need, (who if need else None)
        for c in self.ins:
            if c.kind not in ("label", "dir"):
                need, who = check(out, c)
                if need:
                    if verbose: print(f"  nop {need}: [{who.text}] -> [{c.text}]")
                    k = need
                    while k > 0:
                        m = min(k, 16); out.append(Ins(f"s_nop {m-1}")); k -= m
                    nins += need
            out.append(c)
        self.ins = out
        for lab in loops:
            hi = next(i for i, x in enumerate(out) if x.kind == "label" and x.mn == lab + ":")
            for bi, x in enumerate(out):
                if x.mn.startswith(("s_cbranch", "s_branch")) and x.text.split(";")[0].split()[-1] == lab:
                    hist = list(out[max(0, bi - 40):bi + 1])
                    for c in out[hi:hi + 30]:
                        if c.kind not in ("label", "dir"):
                            need, who = check(hist, c)
                            if need: raise RuntimeError(f"loop back-edge hazard {lab}: [{who.text}] -> [{c.text}] short by {need}")
                        hist.append(c)
        return nins
    def check_waits(self, verbose=True, loops=()):
        seq = list(self.ins)
        for lab in loops:
            hi = next(i for i, x in enumerate(seq) if x.kind == "label" and x.mn == lab + ":")
            bi = max(i for i, x in enumerate(seq) if x.mn.startswith(("s_cbranch", "s_branch")) and x.text.split(";")[0].split()[-1] == lab)
            seq = seq[:bi + 1] + seq[hi + 1:bi + 1] + seq[bi + 1:]
        vm, lg = [], []
        errs = 0
        for c in seq:
            if c.kind in ("label", "dir"): continue
            if c.mn == "s_waitcnt":
                m = re.search(r"vmcnt\((\d+)\)", c.text)
                if m:
                    n = int(m.group(1)); vm = vm[len(vm) - n:] if n < len(vm) else vm
                    if n == 0: vm = []
                m = re.search(r"lgkmcnt\((\d+)\)", c.text)
                if m:
                    n = int(m.group(1))
                    if n == 0: lg = []
                    elif any(x.kind == "smem" for x in lg): pass
                    else: lg = lg[len(lg) - n:] if n < len(lg) else lg
                continue
            touched = set(c.src) | set(c.dst) | set(c.srcc)
            for p in vm + lg:
                if set(p.dst) & touched and not (p.mods.find("dummy") >= 0 or p.tag == "dummy"):
                    errs += 1
                    if verbose: print(f"  WAIT ERROR: [{c.text}] touches pending [{p.text}]")
            if c.kind in ("vmem", "dma"): vm.append(c)
            if c.kind in ("ds", "smem"): lg.append(c)
            if len(vm) > 63 and verbose and False: print("  note: >63 vmem outstanding at", c.text)
        return errs
    def text(self):
        o = []
        for x in self.ins:
            o.append(x.text if x.kind in ("label", "dir") else "    " + x.text)
        return "\n".join(o)

class VmTracker:
    def __init__(self): self.q = []
    def issue(self, tag): self.q.append(tag)
    def wait_n(self, tag):
        idx = max(i for i, t in enumerate(self.q) if t == tag)
        n = len(self.q) - 1 - idx
        return n

def interleave(mains, fillers, budget=None):
    out = []
    tot = sum(c for c, _ in fillers)
    n = len(mains)
    fi = 0; acc = 0.0
    for i, m in enumerate(mains):
        out += m
        target = tot * (i + 1) / n
        while fi < len(fillers) and acc + fillers[fi][0] * 0.5 <= target:
            out.append(fillers[fi][1]); acc += fillers[fi][0]; fi += 1
    out += [t for _, t in fillers[fi:]]
    return out

def resolve_waits(asm):
    vm, lg = [], []
    out = []
    for c in asm.ins:
        if c.kind == "pseudo":
            which, tag = c.mn, c.tag
            q = vm if which == "@wv" else lg
            idx = [i for i, t in enumerate(q) if t == tag]
            if not idx:
                raise RuntimeError(f"wait for unknown/retired tag {tag}")
            n = len(q) - 1 - max(idx)
            lim = 63 if which == "@wv" else 15
            n = min(n, lim)
            out.append(Ins(f"s_waitcnt {'vmcnt' if which == '@wv' else 'lgkmcnt'}({n})"))
            continue
        if c.kind in ("vmem", "dma"): vm.append(c.tag)
        if c.kind in ("ds", "smem"): lg.append(c.tag)
        out.append(c)
    asm.ins = out

class Pseudo(Ins):
    def __init__(self, which, tag):
        self.text = f"; {which} {tag}"; self.mn = which; self.kind = "pseudo"; self.tag = tag
        self.dst = []; self.src = []; self.srcc = []; self.passes = 0; self.mods = ""
def WV(tag): return Pseudo("@wv", tag)
def WL(tag): return Pseudo("@wl", tag)
def T(text, tag): return Ins(text, tag)

def cost(x):
    if isinstance(x, str): x = Ins(x)
    if x.kind == "trans": return 8
    if x.kind in ("label", "dir"): return 0
    return 4

def kernel_desc(name, vgpr, sgpr, accum):
    return f""".p2align 6
.amdhsa_kernel {name}
  .amdhsa_next_free_vgpr {vgpr}
  .amdhsa_next_free_sgpr {sgpr}
  .amdhsa_accum_offset {accum}
  .amdhsa_group_segment_fixed_size 0
  .amdhsa_kernarg_size 80
  .amdhsa_user_sgpr_count 2
  .amdhsa_user_sgpr_kernarg_segment_ptr 1
  .amdhsa_system_sgpr_workgroup_id_x 1
.end_amdhsa_kernel"""
```

```python
from asmlib import *
import struct, math
WS_Q = 0
WS_K = 2 << 20
WS_V = 4 << 20
WS_O = 6 << 20
WS_H = 8 << 20
WS_SIZE = 16 << 20
def f2u(x): return struct.unpack("<I", struct.pack("<f", x))[0]
def hx(x): return f"0x{x & 0xffffffff:08x}"
LOG2E = 1.4426950408889634
QSCALE = 0.25 * LOG2E
GELU_A = -2.0 * LOG2E * math.sqrt(2.0 / math.pi)
GELU_B = GELU_A * 0.044715

def srd(A, d, base, size):
    A(f"s_mov_b32 {s(d)}, {s(base)}")
    A(f"s_and_b32 {s(d+1)}, {s(base+1)}, 0xffff")
    A(f"s_mov_b32 {s(d+2)}, {hx(size)}")
    A(f"s_mov_b32 {s(d+3)}, 0x00020000")

def code_prefetch(A, name, nthreads, vtmp, vdst, spair, endlabel):
    A(f"s_getpc_b64 {s(spair,2)}")
    A(f"v_lshlrev_b32 {v(vtmp)}, 7, v0")
    return
```

```python
from common import *

def gen_k1(name, opts=None):
    opts = opts or {}
    A = Asm()
    sX, sW, sQ, sWS, sC = 16, 20, 24, 28, 32
    sWave, sTb, sCb, sTt = 36, 37, 38, 39
    sT0, sT1, sT2, sT3 = 40, 41, 42, 43
    sMask, sOnes = 44, 45
    sAg, sAl, sOg, sOl, sBg, sCg, sCl, sXg, sXl = 46, 47, 48, 49, 50, 51, 52, 53, 54
    sHo, sQo, sVo = 55, 56, 57
    vLane16, vPair, vOdd, vQkv, vaP, vaO, vaQ = 1, 2, 3, 4, 5, 6, 7
    vM, vGA, vGB, vGC = 8, 9, 10, 11
    vT = [12, 13, 14, 15]
    ACC = [16, 32, 48, 64, 80, 96, 112]
    XC = 128
    LDS_TOT = 163840
    RS_OFF = LDS_TOT - 512
    SZ_A, SZ_B, SZ_C = 20992, 16640, 24576
    UOFF = 8192 + 32
    ODD_G, ODD_U = 16640, 16640 + 2176

    A(f"s_cmp_ge_u32 s2, 256")
    A(f"s_cbranch_scc1 {name}_end")
    A(f"s_load_dwordx4 s[4:7], s[0:1], 0")
    A(f"s_load_dwordx4 s[8:11], s[0:1], 32")
    A(f"s_load_dwordx2 s[12:13], s[0:1], 72")
    if opts.get("prefetch", True):
        A(f"s_getpc_b64 {s(sC,2)}")
        A(f"{name}_pc:")
        A(f"s_and_b32 {s(sC+1)}, {s(sC+1)}, 0xffff")
        A(f"s_mov_b32 {s(sC+2)}, {name}_codeend-{name}_pc")
        A(f"s_mov_b32 {s(sC+3)}, 0x00020000")
        A(f"v_lshlrev_b32 v20, 7, v0")
        A(f"buffer_load_dword v21, v20, {s(sC,4)}, 0 offen", "dummy")
    A(f"v_lshrrev_b32 v16, 6, v0")
    A(f"v_and_b32 v17, 63, v0")
    A(f"s_and_b32 {s(sT0)}, s2, 7")
    A(f"v_readfirstlane_b32 {s(sWave)}, v16")
    A(f"s_lshr_b32 {s(sT1)}, s2, 3")
    A(f"s_and_b32 {s(sTb)}, {s(sT0)}, 1")
    A(f"s_lshl_b32 {s(sTb)}, {s(sTb)}, 3")
    A(f"s_and_b32 {s(sT2)}, {s(sT1)}, 7")
    A(f"s_add_u32 {s(sTb)}, {s(sTb)}, {s(sT2)}")
    A(f"s_lshr_b32 {s(sCb)}, {s(sT0)}, 1")
    A(f"s_lshl_b32 {s(sCb)}, {s(sCb)}, 2")
    A(f"s_lshr_b32 {s(sT2)}, {s(sT1)}, 3")
    A(f"s_add_u32 {s(sCb)}, {s(sCb)}, {s(sT2)}")
    A(f"s_lshl_b32 {s(sTt)}, {s(sTb)}, 2")
    A(f"s_add_u32 {s(sTt)}, {s(sTt)}, {s(sWave)}")
    A(f"s_lshl_b32 {s(sXg)}, {s(sTt)}, 15")
    A(f"s_lshl_b32 {s(sXl)}, {s(sWave)}, 15")
    for m in range(16):
        A(f"v_xor_b32 v{32+m}, {m}, v17")
        A(f"v_lshlrev_b32 v{32+m}, 4, v{32+m}")
        if m & ~3: A(f"v_add_u32 v{32+m}, {(m & ~3) * 1024}, v{32+m}")
    A("s_waitcnt lgkmcnt(0)")
    srd(A, sX, 4, 2048 * 1024)
    for b in range(2):
        for g in range(4):
            A(f"s_add_u32 m0, {s(sXl)}, {b * 16384 + g * 4096}")
            if g == 0:
                A(f"s_add_u32 {s(sT0)}, {s(sXg)}, {b * 16384}")
            for i in range(4):
                A(f"buffer_load_dwordx4 v{32 + g * 4 + i}, {s(sX,4)}, {s(sT0)} offen offset:{i * 1024} lds", "x")
    A(f"s_cmp_ge_u32 {s(sWave)}, 2")
    A(f"s_cselect_b32 {s(sW)}, s10, s8")
    A(f"s_cselect_b32 {s(sW+1)}, s11, s9")
    A(f"s_cselect_b32 {s(sT3)}, 1, 0")
    A(f"s_and_b32 {s(sW+1)}, {s(sW+1)}, 0xffff")
    A(f"s_mov_b32 {s(sW+2)}, {512 * 3584}")
    A(f"s_mov_b32 {s(sW+3)}, 0x00020000")
    srd(A, sQ, 6, 512 * 3072)
    srd(A, sWS, 12, WS_SIZE)
    A(f"s_and_b32 {s(sT2)}, {s(sWave)}, 1")
    A(f"s_mul_i32 {s(sT0)}, {s(sCb)}, 224")
    A(f"s_lshl_b32 {s(sT1)}, {s(sT2)}, 6")
    A(f"s_add_u32 {s(sAg)}, {s(sT0)}, {s(sT1)}")
    A(f"s_mul_i32 {s(sAl)}, {s(sT3)}, {UOFF}")
    A(f"s_lshl_b32 {s(sT1)}, {s(sT2)}, 12")
    A(f"s_add_u32 {s(sAl)}, {s(sAl)}, {s(sT1)}")
    A(f"s_mul_i32 {s(sT1)}, {s(sT2)}, {32 * 3584}")
    A(f"s_add_u32 {s(sOg)}, {s(sT0)}, {s(sT1)}")
    A(f"s_add_u32 {s(sOg)}, {s(sOg)}, 192")
    A(f"s_mul_i32 {s(sOl)}, {s(sT3)}, 2176")
    A(f"s_lshl_b32 {s(sT1)}, {s(sT2)}, 10")
    A(f"s_add_u32 {s(sOl)}, {s(sOl)}, {s(sT1)}")
    A(f"s_add_u32 {s(sOl)}, {s(sOl)}, {ODD_G}")
    A(f"s_mul_i32 {s(sT1)}, {s(sT2)}, {64 * 3584}")
    A(f"s_add_u32 {s(sBg)}, {s(sT0)}, {s(sT1)}")
    A(f"s_add_u32 {s(sBg)}, {s(sBg)}, 128")
    A(f"s_mul_i32 {s(sCg)}, {s(sWave)}, {32 * 3072}")
    A(f"s_lshl_b32 {s(sT1)}, {s(sCb)}, 6")
    A(f"s_add_u32 {s(sCg)}, {s(sCg)}, {s(sT1)}")
    A(f"s_lshl_b32 {s(sCl)}, {s(sWave)}, 11")
    A(f"s_mov_b32 {s(sMask)}, 0xffff0000")
    A(f"s_mov_b32 {s(sOnes)}, 0x3f803f80")
    A(f"v_lshlrev_b32 {v(vLane16)}, 4, v17")
    A(f"v_lshrrev_b32 v18, 2, v17")
    A(f"v_and_b32 v19, 3, v17")
    A(f"v_lshlrev_b32 v19, 4, v19")
    A(f"v_mul_u32_u24 {v(vPair)}, 3584, v18")
    A(f"v_add_u32 {v(vPair)}, {v(vPair)}, v19")
    A(f"v_mul_u32_u24 {v(vQkv)}, 3072, v18")
    A(f"v_add_u32 {v(vQkv)}, {v(vQkv)}, v19")
    A(f"v_lshrrev_b32 v18, 1, v17")
    A(f"v_and_b32 v19, 1, v17")
    A(f"v_lshlrev_b32 v19, 4, v19")
    A(f"v_mul_u32_u24 {v(vOdd)}, 3584, v18")
    A(f"v_add_u32 {v(vOdd)}, {v(vOdd)}, v19")

    chunks = []
    for c in range(8): chunks.append(("A", 4 * c, 4, SZ_A))
    for c in range(4): chunks.append(("B", 8 * c, 8, SZ_B))
    for c in range(4): chunks.append(("C", 8 * c, 8, SZ_C))
    def dma_groups(ci, base):
        p, s0, ns, _ = chunks[ci]
        row0 = s0 * 16
        G = []
        tag = f"c{ci}"
        if p == "A":
            g = [f"s_add_u32 m0, {s(sAl)}, {base}"]
            for i in range(4):
                g += [f"s_add_u32 {s(sT0)}, {s(sAg)}, {(row0 + 16 * i) * 3584 - 1024 * i}",
                      T(f"buffer_load_dwordx4 {v(vPair)}, {s(sW,4)}, {s(sT0)} offen offset:{1024 * i} lds", tag)]
                G.append(g); g = []
            G.append([f"s_add_u32 m0, {s(sOl)}, {base}", f"s_add_u32 {s(sT0)}, {s(sOg)}, {row0 * 3584}",
                      T(f"buffer_load_dwordx4 {v(vOdd)}, {s(sW,4)}, {s(sT0)} offen lds", tag)])
        elif p == "B":
            g = [f"s_add_u32 m0, {s(sAl)}, {base}"]
            for i in range(4):
                g += [f"s_add_u32 {s(sT0)}, {s(sBg)}, {(row0 + 16 * i) * 3584 - 1024 * i}",
                      T(f"buffer_load_dwordx4 {v(vPair)}, {s(sW,4)}, {s(sT0)} offen offset:{1024 * i} lds", tag)]
                G.append(g); g = []
        else:
            for t in range(3):
                g = [f"s_add_u32 m0, {s(sCl)}, {base + t * 8192}"]
                for i in range(2):
                    g += [f"s_add_u32 {s(sT0)}, {s(sCg)}, {(row0 + 16 * i) * 3072 + t * 1024 - 1024 * i}",
                          T(f"buffer_load_dwordx4 {v(vQkv)}, {s(sQ,4)}, {s(sT0)} offen offset:{1024 * i} lds", tag)]
                    G.append(g); g = []
        return G
    base = {0: 131072}
    live = {0: (131072, SZ_A)}
    issue_at = {}
    ptr = 0; nxt = 1
    for k in range(len(chunks)):
        if k >= 2: live.pop(k - 2)
        while nxt < len(chunks):
            sz = chunks[nxt][3]
            placed = None
            for cand in (ptr, 0):
                if cand + sz <= RS_OFF and all(cand + sz <= b or cand >= b + z for b, z in live.values()):
                    placed = cand; break
            if placed is None: break
            base[nxt] = placed; live[nxt] = (placed, sz); ptr = placed + sz
            issue_at.setdefault(k, []).append(nxt); nxt += 1
    assert len(base) == len(chunks)
    if opts.get("verbose"): print("K1 ring:", base, issue_at)

    for g in dma_groups(0, base[0]): A.extend(g)
    A(f"v_and_b32 v18, 31, v17")
    A(f"v_lshrrev_b32 v19, 5, v17")
    A(f"v_and_b32 v22, 15, v17")
    A(f"v_xor_b32 v22, v22, v19")
    A(f"v_lshlrev_b32 v23, 10, v18")
    A(f"v_add_u32 v23, {s(sXl)}, v23")
    for e in range(8):
        A(f"v_xor_b32 v{48+e}, {2*e}, v22")
        A(f"v_lshl_add_u32 v{48+e}, v{48+e}, 4, v23")
    A(f"v_bfe_u32 v24, v17, 2, 2")
    A(f"v_lshl_add_u32 v24, v19, 3, v24")
    A(f"v_and_b32 v25, 3, v17")
    A(f"v_lshlrev_b32 v25, 3, v25")
    A(f"v_bfe_u32 v26, v17, 4, 1")
    A(f"v_lshl_add_u32 v27, v24, 6, v25")
    A(f"v_mul_u32_u24 v28, {UOFF}, v26")
    A(f"v_add_u32 {v(vaP)}, v27, v28")
    A(f"v_lshl_add_u32 {v(vaQ)}, v26, 5, v27")
    A(f"v_lshl_add_u32 v27, v24, 5, v25")
    A(f"v_mul_u32_u24 v28, 2176, v26")
    A(f"v_add_u32 {v(vaO)}, v27, v28")
    abase = {vaP: 0, vaO: 0, vaQ: 0}
    def lds_ref(reg, addr, pre):
        off = addr - abase[reg]
        if off < 0 or off > 65535 - 8:
            nb = addr & ~0x3ff
            pre.append(f"v_add_u32 {v(reg)}, {hx(nb - abase[reg])}, {v(reg)}")
            abase[reg] = nb; off = addr - nb
        return off
    A(f"s_mul_i32 {s(sHo)}, {s(sTt)}, 112")
    A(f"s_mul_i32 {s(sT0)}, {s(sCb)}, 7")
    A(f"s_add_u32 {s(sHo)}, {s(sHo)}, {s(sT0)}")
    A(f"s_lshl_b32 {s(sHo)}, {s(sHo)}, 10")
    A(f"s_add_u32 {s(sHo)}, {s(sHo)}, {WS_H}")
    A(f"s_lshl_b32 {s(sQo)}, {s(sCb)}, 17")
    A(f"s_lshl_b32 {s(sT0)}, {s(sTt)}, 10")
    A(f"s_add_u32 {s(sQo)}, {s(sQo)}, {s(sT0)}")
    NA = 8
    SX, SQ = 64, 72
    for i in range(16): A(f"v_mov_b32 v{64+i}, 0")
    A.extend([WV("x")])
    def xread(st): return T(f"ds_read_b128 {v(XC + 4*st, 4)}, v{48 + st % 8} offset:{(st // 8) * 256}", f"x{st//8}")
    def stats(st):
        o = []
        for r in range(4):
            x = XC + 4 * st + r; k = (4 * st + r) % NA
            o.append(f"v_dot2_f32_bf16 v{SX+k}, v{x}, {s(sOnes)}, v{SX+k}")
            o.append(f"v_dot2_f32_bf16 v{SQ+k}, v{x}, v{x}, v{SQ+k}")
        return o
    for st in range(0, 14): A.extend([xread(st)])
    A.extend([WL("x0")])
    for st in range(0, 8):
        A.extend(stats(st))
        if 14 + st < 22: A.extend([xread(14 + st)])
    A.extend([WL("x1")])
    for st in range(22, 29): A.extend([xread(st)])
    for st in range(8, 12): A.extend(stats(st))
    for st in range(29, 32): A.extend([xread(st)])
    for st in range(12, 16): A.extend(stats(st))
    A("s_waitcnt vmcnt(0) lgkmcnt(0)")
    A("s_barrier")
    pend = []
    for ci in issue_at.get(0, []): pend += dma_groups(ci, base[ci])
    first_burst = pend[:12]; pend = pend[12:]
    fl = [(4, t) for st in range(16, 32) for t in stats(st)]
    A.extend(interleave(first_burst, fl))

    FR = 20
    steps = [("A", k) for k in range(32)] + [("B", k) for k in range(32)] + [("C", k) for k in range(32)]
    def chunk_of(gi):
        p, k = steps[gi]
        for ci, (pp, s0, ns, _) in enumerate(chunks):
            if pp == p and s0 <= k < s0 + ns: return ci
    def frag_reads(gi):
        p, k = steps[gi]; ci = chunk_of(gi); ls = k - chunks[ci][1]; b = base[ci]
        fs = (gi % 3) * FR
        out = []
        if p == "A": tl = [(vaP, 0, 1024, 256), (vaP, 32, 1024, 256), (vaP, 4096, 1024, 256), (vaP, 4096 + 32, 1024, 256), (vaO, ODD_G, 512, 128)]
        elif p == "B": tl = [(vaP, 0, 1024, 256), (vaP, 32, 1024, 256)]
        else: tl = [(vaQ, 0, 1024, 256), (vaQ, 8192, 1024, 256), (vaQ, 16384, 1024, 256)]
        for ti, (reg, o, sp, rp) in enumerate(tl):
            for rd in range(2):
                pre = []
                off = lds_ref(reg, b + o + ls * sp + rd * rp, pre)
                out.append(pre + [T(f"ds_read_b64_tr_b16 {a(fs + 4*ti + 2*rd, 2)}, {v(reg)} offset:{off}", f"f{gi}")])
        return out
    for g in frag_reads(0) + frag_reads(1): A.extend(g)

    for base_r in (SX, SQ):
        for st_ in (4, 2, 1):
            for i in range(st_): A(f"v_add_f32 v{base_r+i}, v{base_r+i}, v{base_r+i+st_}")
    A(f"v_mov_b32 v65, v64")
    A(f"v_mov_b32 v73, v72")
    A(f"v_permlane32_swap_b32 v64, v65")
    A(f"v_permlane32_swap_b32 v72, v73")
    A(f"v_add_f32 v64, v64, v65")
    A(f"v_add_f32 v72, v72, v73")
    A(f"v_mul_f32 v64, {hx(f2u(1/512))}, v64")
    A(f"v_mul_f32 v72, {hx(f2u(1/512))}, v72")
    A(f"v_cvt_pk_bf16_f32 {v(vM)}, v64, v64")
    A(f"v_fma_f32 v72, -v64, v64, v72")
    A(f"v_and_b32 {v(vM)}, {s(sMask)}, {v(vM)}")
    A(f"v_max_f32 v72, 0, v72")
    def center(st):
        o = []
        for r in range(4):
            x = XC + 4 * st + r; t0, t1 = vT[(r % 2) * 2], vT[(r % 2) * 2 + 1]
            o += [f"v_lshlrev_b32 {v(t0)}, 16, {v(x)}", f"v_and_b32 {v(t1)}, {s(sMask)}, {v(x)}",
                  f"v_sub_f32 {v(t0)}, {v(t0)}, {v(vM)}", f"v_sub_f32 {v(t1)}, {v(t1)}, {v(vM)}",
                  f"v_cvt_pk_bf16_f32 {v(x)}, {v(t0)}, {v(t1)}"]
        return o
    A.extend(center(0))
    A(f"v_cvt_pk_bf16_f32 v72, v72, v72")
    A(f"v_and_b32 v72, {s(sMask)}, v72")
    A(f"v_add_f32 v72, {hx(f2u(1e-5))}, v72")
    A(f"v_cvt_pk_bf16_f32 v72, v72, v72")
    A(f"v_and_b32 v72, {s(sMask)}, v72")
    A(f"v_sqrt_f32 v72, v72")
    A(f"s_nop 0")
    A(f"v_cvt_pk_bf16_f32 v72, v72, v72")
    A(f"v_and_b32 v72, {s(sMask)}, v72")
    A(f"v_rcp_f32 v73, v72")
    A(f"v_mul_f32 {v(vGC)}, v72, v72")
    A(f"v_mul_f32 {v(vGA)}, {hx(f2u(GELU_A))}, v73")
    A(f"v_mul_f32 v74, v73, v73")
    A(f"v_mul_f32 v74, v74, v73")
    A(f"v_mul_f32 {v(vGB)}, {hx(f2u(GELU_B))}, v74")
    A(f"v_accvgpr_write_b32 a60, v73")
    A(f"v_and_b32 v74, 31, v0")
    A(f"v_lshlrev_b32 v74, 2, v74")
    A(f"s_lshl_b32 {s(sT1)}, {s(sWave)}, 7")
    A(f"s_add_u32 {s(sT1)}, {s(sT1)}, {RS_OFF}")
    A(f"v_add_u32 v74, {s(sT1)}, v74")
    A(f"ds_write_b32 v74, v73", "f1")

    def gelu(acc, unit):
        o = []
        for j0 in range(0, 8, 2):
            pr = [(acc + j0, acc + 8 + j0, vT[0]), (acc + j0 + 1, acc + 9 + j0, vT[1])]
            if (j0 // 2) % 2: pr = [(pr[0][0], pr[0][1], vT[2]), (pr[1][0], pr[1][1], vT[3])]
            for G, U, t in pr: o.append(f"v_mul_f32 {v(t)}, {v(G)}, {v(G)}")
            for G, U, t in pr: o.append(f"v_fma_f32 {v(t)}, {v(t)}, {v(vGB)}, {v(vGA)}")
            for G, U, t in pr: o.append(f"v_mul_f32 {v(t)}, {v(G)}, {v(t)}")
            for G, U, t in pr: o.append(f"v_exp_f32 {v(t)}, {v(t)}")
            for G, U, t in pr: o.append(f"v_mul_f32 {v(U)}, {v(G)}, {v(U)}")
            for G, U, t in pr: o.append(f"v_fma_f32 {v(t)}, {v(t)}, {v(vGC)}, {v(vGC)}")
            for G, U, t in pr: o.append(f"v_rcp_f32 {v(t)}, {v(t)}")
            o.append("s_nop 0") if False else None
            for G, U, t in pr: o.append(f"v_mul_f32 {v(U)}, {v(U)}, {v(t)}")
            o.append(f"v_cvt_pk_bf16_f32 {v(acc + j0 // 2)}, {v(acc + 8 + j0)}, {v(acc + 9 + j0)}")
        o.append(f"s_add_u32 {s(sT1)}, {s(sHo)}, {unit * 1024}")
        o.append(f"buffer_store_dwordx4 {v(acc, 4)}, {v(vLane16)}, {s(sWS,4)}, {s(sT1)} offen")
        return o
    optq = {"B": gelu(ACC[0], 0) + gelu(ACC[1], 1) + gelu(ACC[2], 2),
            "C": gelu(ACC[3], 3) + gelu(ACC[4], 6) + gelu(ACC[5], 4) + gelu(ACC[6], 5)}
    optpos = {"B": 0, "C": 0}
    for gi, (p, k) in enumerate(steps):
        ci = chunk_of(gi); ls = k - chunks[ci][1]; ns = chunks[ci][2]
        fs = (gi % 3) * FR
        accs = {"A": ACC[0:5], "B": ACC[5:7], "C": ACC[0:3]}[p]
        mains = []
        for ti, ac in enumerate(accs):
            c = "0" if k == 0 else v(ac, 16)
            w = a(fs + 4 * ti, 4); x = v(XC + 4 * k, 4)
            if p == "C" and ti == 2: m = f"v_mfma_f32_32x32x16_bf16 {v(ac,16)}, {x}, {w}, {c}"
            else: m = f"v_mfma_f32_32x32x16_bf16 {v(ac,16)}, {w}, {x}, {c}"
            mains.append([m])
        mains[0].insert(0, WL(f"f{gi}"))
        if ls == ns - 2 and ci + 1 < len(chunks):
            mains[0] += [WV(f"c{ci+1}"), "s_barrier"]
            for cj in issue_at.get(ci + 1, []): pend += dma_groups(cj, base[cj])
        rd = frag_reads(gi + 2) if gi + 2 < len(steps) else []
        fill = []
        if p == "A" and k + 1 < 32: fill += center(k + 1)
        if p in optq:
            q = optq[p]; lo = optpos[p]
            hi = 0 if k == 0 else min(len(q), (len(q) * k + 29) // 30)
            fill += q[lo:hi]; optpos[p] = max(lo, hi)
        ndma = 2 if p == "A" else 1
        dm = []
        for _ in range(ndma):
            if pend: dm.append(pend.pop(0))
        n = len(mains)
        for i, g in enumerate(rd): mains[min(n - 1, i * n // len(rd))] += g
        for i, g in enumerate(dm): mains[(2 * i + 1) % n] += g
        A.extend(interleave(mains, [(cost(t), t) for t in fill]))
    assert not pend
    for p in optq: assert optpos[p] == len(optq[p])
    A(f"v_accvgpr_read_b32 {v(vM)}, a60")
    A(f"v_lshrrev_b32 v64, 5, v0")
    A(f"v_and_b32 v64, 1, v64")
    A(f"v_lshlrev_b32 v65, 4, v64")
    A(f"s_lshl_b32 {s(sT1)}, {s(sWave)}, 7")
    A(f"s_add_u32 {s(sT1)}, {s(sT1)}, {RS_OFF}")
    A(f"v_add_u32 v65, {s(sT1)}, v65")
    for q in range(4): A(f"ds_read_b128 {v(68 + 4*q, 4)}, v65 offset:{32*q}", "rs")
    A(f"v_mul_f32 {v(vGA)}, {hx(f2u(QSCALE))}, {v(vM)}")
    A(f"v_bfe_u32 v66, v0, 4, 1")
    A(f"v_lshlrev_b32 v66, 16, v66")
    A(f"v_lshl_add_u32 v66, v64, 8, v66")
    A(f"v_and_b32 v67, 15, v0")
    A(f"v_lshl_add_u32 v66, v67, 4, v66")
    for ti, (sc, off) in enumerate(((vGA, WS_Q), (vM, WS_K))):
        ac = ACC[ti]
        for hh in range(2):
            for r in range(8): A(f"v_mul_f32 {v(ac + 8*hh + r)}, {v(sc)}, {v(ac + 8*hh + r)}")
            for r in range(4): A(f"v_cvt_pk_bf16_f32 {v(ac + 8*hh + r)}, {v(ac + 8*hh + 2*r)}, {v(ac + 8*hh + 2*r + 1)}")
            A(f"s_add_u32 {s(sT1)}, {s(sQo)}, {off + hh * 65536}")
            A(f"buffer_store_dwordx4 {v(ac + 8*hh, 4)}, {v(vLane16)}, {s(sWS,4)}, {s(sT1)} offen")
    A.extend([WL("rs")])
    ac = ACC[2]
    A(f"s_add_u32 {s(sT1)}, {s(sQo)}, {WS_V}")
    for g in range(2):
        for r in range(8): A(f"v_mul_f32 {v(ac + 8*g + r)}, {v(68 + 8*g + r)}, {v(ac + 8*g + r)}")
        for r in range(4): A(f"v_cvt_pk_bf16_f32 {v(ac + 8*g + r)}, {v(ac + 8*g + 2*r)}, {v(ac + 8*g + 2*r + 1)}")
        A(f"buffer_store_dwordx4 {v(ac + 8*g, 4)}, v66, {s(sWS,4)}, {s(sT1)} offen offset:{512*g}")
    A(f"{name}_end:")
    A("s_endpgm")
    A(f"{name}_codeend:")
    resolve_waits(A)
    n = A.fix_hazards(verbose=opts.get("verbose"))
    e = A.check_waits()
    assert e == 0
    print(f"{name}: {len(A.ins)} lines, {n} nop states inserted")
    return A.text(), kernel_desc(name, 256 + 64, 64, 256), f"kernel={name} grid=(256,1,1) block=(256,1,1) lds={LDS_TOT}"
```

```python
from common import *

def gen_k2(name, opts=None):
    opts = opts or {}
    A = Asm()
    sWS, sC = 16, 20
    sWave, sHead, sQb, sT0, sT1, sKo, sVo, sCnt, sQh, sKh = 24, 25, 26, 27, 28, 29, 30, 31, 32, 33
    sEx = 34
    sQt = 36
    sOk = 38
    sOk2 = 40
    vL16, vVo = 1, 2
    Q = 4
    P = 20
    S = 36
    O = 68
    K = 132
    V = 148
    vT = 180
    NV = 184
    A(f"s_cmp_ge_u32 s2, 256")
    A(f"s_cbranch_scc1 {name}_end")
    A(f"s_load_dwordx2 s[4:5], s[0:1], 72")
    if opts.get("prefetch", True):
        A(f"s_getpc_b64 {s(sC,2)}")
        A(f"{name}_pc:")
        A(f"s_and_b32 {s(sC+1)}, {s(sC+1)}, 0xffff")
        A(f"s_mov_b32 {s(sC+2)}, {name}_codeend-{name}_pc")
        A(f"s_mov_b32 {s(sC+3)}, 0x00020000")
        A(f"v_lshlrev_b32 v3, 7, v0")
        A(f"buffer_load_dword v{vT+3}, v3, {s(sC,4)}, 0 offen", "dummy")
    A(f"v_lshrrev_b32 v3, 6, v0")
    A(f"s_and_b32 {s(sT0)}, s2, 7")
    A(f"v_readfirstlane_b32 {s(sWave)}, v3")
    A(f"s_lshr_b32 {s(sT1)}, s2, 3")
    A(f"s_lshl_b32 {s(sHead)}, {s(sT0)}, 2")
    A(f"s_and_b32 {s(sT0)}, {s(sT1)}, 3")
    A(f"s_add_u32 {s(sHead)}, {s(sHead)}, {s(sT0)}")
    A(f"s_lshr_b32 {s(sQb)}, {s(sT1)}, 2")
    A(f"s_and_b32 {s(sQh)}, {s(sWave)}, 1")
    A(f"s_lshr_b32 {s(sKh)}, {s(sWave)}, 1")
    A(f"v_and_b32 {v(vL16)}, 63, v0")
    A(f"v_lshrrev_b32 v3, 5, {v(vL16)}")
    A(f"v_and_b32 {v(vVo)}, 15, v0")
    A(f"v_lshlrev_b32 {v(vVo)}, 4, {v(vVo)}")
    A(f"v_lshl_add_u32 {v(vVo)}, v3, 8, {v(vVo)}")
    A(f"v_lshlrev_b32 {v(vL16)}, 4, {v(vL16)}")
    A(f"s_lshl_b32 {s(sT0)}, {s(sHead)}, 16")
    A(f"s_lshl_b32 {s(sT1)}, {s(sKh)}, 15")
    A(f"s_add_u32 {s(sKo)}, {s(sT0)}, {s(sT1)}")
    A(f"s_add_u32 {s(sVo)}, {s(sKo)}, {WS_V}")
    A(f"s_add_u32 {s(sKo)}, {s(sKo)}, {WS_K}")
    A(f"s_lshl_b32 {s(sQt)}, {s(sQb)}, 3")
    A(f"s_lshl_b32 {s(sT1)}, {s(sQh)}, 2")
    A(f"s_add_u32 {s(sQt)}, {s(sQt)}, {s(sT1)}")
    A(f"s_lshl_b32 {s(sT1)}, {s(sKh)}, 1")
    A(f"s_add_u32 {s(sQt)}, {s(sQt)}, {s(sT1)}")
    A(f"s_xor_b32 {s(sT1)}, {s(sQt)}, 2")
    A(f"s_lshl_b32 {s(sT1)}, {s(sT1)}, 10")
    A(f"s_add_u32 {s(sT1)}, {s(sT1)}, {s(sT0)}")
    A(f"s_lshl_b32 {s(sCnt)}, {s(sQt)}, 10")
    A(f"s_add_u32 {s(sT0)}, {s(sT0)}, {s(sCnt)}")
    A(f"s_mov_b32 {s(sEx)}, 0x0000ffff")
    A(f"s_mov_b32 {s(sEx+1)}, 0x0000ffff")
    for i in range(32): A(f"v_mov_b32 {v(V+i)}, 0x3f803f80")
    A("s_waitcnt lgkmcnt(0)")
    srd(A, sWS, 4, WS_SIZE)
    def kv_loads(b, off):
        return [f"buffer_load_dwordx4 {v(K+4*b,4)}, {v(vL16)}, {s(sWS,4)}, {s(sKo)} offen offset:{off}",
                f"s_mov_b64 exec, {s(sEx,2)}",
                f"buffer_load_dwordx4 {v(V+8*b,4)}, {v(vVo)}, {s(sWS,4)}, {s(sVo)} offen offset:{off}",
                f"buffer_load_dwordx4 {v(V+8*b+4,4)}, {v(vVo)}, {s(sWS,4)}, {s(sVo)} offen offset:{off+512}",
                f"s_mov_b64 exec, -1"]
    A(f"buffer_load_dwordx4 {v(Q,4)}, {v(vL16)}, {s(sWS,4)}, {s(sT0)} offen")
    A.extend(kv_loads(0, 0))
    A(f"buffer_load_dwordx4 {v(Q+4,4)}, {v(vL16)}, {s(sWS,4)}, {s(sT0)} offen offset:1024")
    A(f"buffer_load_dwordx4 {v(Q+8,4)}, {v(vL16)}, {s(sWS,4)}, {s(sT1)} offen")
    A(f"buffer_load_dwordx4 {v(Q+12,4)}, {v(vL16)}, {s(sWS,4)}, {s(sT1)} offen offset:1024")
    for b in range(1, 3): A.extend(kv_loads(b, 1024 * b))
    for i in range(64): A(f"v_mov_b32 {v(O+i)}, 0")
    for i in range(8): A(f"v_mov_b32 {v(P+8+i)}, 0")
    A(f"s_mov_b32 {s(sCnt)}, 8")
    A("s_waitcnt vmcnt(6)")
    A(f"v_mfma_f32_32x32x16_bf16 {v(S,16)}, {v(K,4)}, {v(Q,4)}, 0")
    A(f"s_nop 7")
    A(f"s_nop 3")
    A(f".p2align 3")
    A(f"{name}_loop:")
    def pv(up):
        pp = P + 8 * (up % 2); oo = O + 16 * (up % 4); vv = V + 8 * (up // 4)
        return (f"v_mfma_f32_32x32x16_bf16 {v(oo,16)}, {v(vv,4)}, {v(pp,4)}, {v(oo,16)}",
                f"v_mfma_f32_32x32x16_bf16 {v(oo,16)}, {v(vv+4,4)}, {v(pp+4,4)}, {v(oo,16)}")
    for u in range(16):
        kt, i = u // 4, u % 4
        sc, pc = S + 16 * (u % 2), P + 8 * (u % 2)
        un = (u + 1) % 16; up = (u - 1) % 16
        mS = f"v_mfma_f32_32x32x16_bf16 {v(S + 16*(un%2),16)}, {v(K + 4*(un//4),4)}, {v(Q + 4*(un%4),4)}, 0"
        mA, mB = pv(up)
        e = [f"v_exp_f32 {v(sc+r)}, {v(sc+r)}" for r in range(16)]
        c = [f"v_cvt_pk_bf16_f32 {v(pc+r)}, {v(sc+2*r)}, {v(sc+2*r+1)}" for r in range(8)]
        seq = [e[0], e[1], e[2], c[0], e[3], e[4], c[1], e[5], e[6], c[2], e[7], e[8], c[3], e[9], e[10], c[4],
               e[11], e[12], c[5], e[13], e[14], e[15], c[6], c[7]]
        pre = ["s_waitcnt vmcnt(6)"] if i == 3 else []
        body = pre + [mS] + seq[0:8] + [mA] + seq[8:16] + [mB] + seq[16:24]
        if i == 1:
            b = (kt - 1) % 4
            ex = kv_loads(b, 1024 * b)
            j = body.index(e[1]); body[j + 1:j + 1] = [ex[0]]
            j = body.index(e[4]); body[j + 1:j + 1] = ex[1:5]
            if kt == 0:
                j = body.index(e[8]); body[j + 1:j + 1] = [f"s_add_u32 {s(sKo)}, {s(sKo)}, 4096"]
                j = body.index(e[10]); body[j + 1:j + 1] = [f"s_add_u32 {s(sVo)}, {s(sVo)}, 4096"]
        if u == 15:
            j = body.index(e[12]); body[j + 1:j + 1] = [f"s_sub_u32 {s(sCnt)}, {s(sCnt)}, 1"]
            j = body.index(e[14]); body[j + 1:j + 1] = [f"s_cmp_lg_u32 {s(sCnt)}, 0"]
        A.extend(body)
    A(f"s_cbranch_scc1 {name}_loop")
    A.extend(pv(15))
    RG = 4608
    A(f"s_mul_i32 {s(sT0)}, {s(sWave)}, {RG}")
    A(f"s_xor_b32 {s(sT1)}, {s(sWave)}, 2")
    A(f"s_mul_i32 {s(sT1)}, {s(sT1)}, {RG}")
    A(f"v_add_u32 v{vT}, {s(sT0)}, {v(vL16)}")
    A(f"v_lshrrev_b32 v{vT+1}, 2, {v(vL16)}")
    A(f"v_add_u32 v{vT+2}, {s(sT1)}, v{vT+1}")
    A(f"v_add_u32 v{vT+1}, {s(sT0)}, v{vT+1}")
    for t in range(2):
        oo = O + 16 * (2 + t)
        A(f"ds_write_b128 v{vT}, {v(oo,4)} offset:{t*2304}")
        A(f"ds_write_b128 v{vT}, {v(oo+4,4)} offset:{t*2304+1024}")
        A(f"ds_write_b32 v{vT+1}, {v(oo+8)} offset:{t*2304+2048}")
    A(f"v_add_u32 v{vT}, {s(sT1)}, {v(vL16)}")
    A("s_waitcnt vmcnt(0) lgkmcnt(0)")
    A("s_barrier")
    for t in range(2):
        A(f"ds_read_b128 {v(S+16*t,4)}, v{vT} offset:{t*2304}")
        A(f"ds_read_b128 {v(S+16*t+4,4)}, v{vT} offset:{t*2304+1024}")
        A(f"ds_read_b32 {v(S+16*t+8)}, v{vT+2} offset:{t*2304+2048}")
    A(f"s_mov_b32 {s(sT0)}, {hx(f2u(2.0**-40))}")
    A(f"s_mov_b32 {s(sT1)}, {hx(f2u(2.0**40))}")
    A("s_waitcnt lgkmcnt(0)")
    for t in range(2):
        for r in range(9): A(f"v_add_f32 {v(O+16*t+r)}, {v(O+16*t+r)}, {v(S+16*t+r)}")
    A(f"v_cmp_le_f32 {s(sOk,2)}, {s(sT0)}, {v(O+8)}")
    A(f"v_cmp_ge_f32 {s(sOk2,2)}, {s(sT1)}, {v(O+8)}")
    A(f"s_and_b64 {s(sOk,2)}, {s(sOk,2)}, {s(sOk2,2)}")
    A(f"v_cmp_le_f32 {s(sOk2,2)}, {s(sT0)}, {v(O+24)}")
    A(f"s_and_b64 {s(sOk,2)}, {s(sOk,2)}, {s(sOk2,2)}")
    A(f"v_cmp_ge_f32 {s(sOk2,2)}, {s(sT1)}, {v(O+24)}")
    A(f"s_and_b64 {s(sOk,2)}, {s(sOk,2)}, {s(sOk2,2)}")
    A(f"s_cmp_eq_u64 {s(sOk,2)}, -1")
    if opts.get("force_slow"): A(f"s_cmp_eq_u32 {s(sCnt)}, 12345")
    A(f"s_cbranch_scc1 {name}_fin")
    for t in range(2):
        oo = O + 16 * t; qq = Q + 4 * t; m, tm, al = vT, vT + 1, vT + 2
        A(f"s_lshl_b32 {s(sKo)}, {s(sHead)}, 16")
        A(f"s_add_u32 {s(sVo)}, {s(sKo)}, {WS_V}")
        A(f"s_add_u32 {s(sKo)}, {s(sKo)}, {WS_K}")
        A(f"s_mov_b32 {s(sCnt)}, 64")
        for r in range(16): A(f"v_mov_b32 {v(oo+r)}, 0")
        A(f"v_mov_b32 {v(m)}, {hx(f2u(-3.0e38))}")
        A(f"{name}_slow{t}:")
        A.extend(kv_loads(0, 0))
        A(f"s_add_u32 {s(sKo)}, {s(sKo)}, 1024")
        A(f"s_add_u32 {s(sVo)}, {s(sVo)}, 1024")
        A("s_waitcnt vmcnt(0)")
        A(f"v_mfma_f32_32x32x16_bf16 {v(S,16)}, {v(K,4)}, {v(qq,4)}, 0")
        A(f"v_max3_f32 {v(tm)}, {v(S)}, {v(S+1)}, {v(m)}")
        for r in range(2, 16, 2): A(f"v_max3_f32 {v(tm)}, {v(S+r)}, {v(S+r+1)}, {v(tm)}")
        A(f"v_mov_b32 {v(al)}, {v(tm)}")
        A(f"v_permlane32_swap_b32 {v(tm)}, {v(al)}")
        A(f"v_max_f32 {v(tm)}, {v(tm)}, {v(al)}")
        A(f"v_sub_f32 {v(al)}, {v(m)}, {v(tm)}")
        A(f"v_exp_f32 {v(al)}, {v(al)}")
        A(f"v_mov_b32 {v(m)}, {v(tm)}")
        for r in range(16): A(f"v_mul_f32 {v(oo+r)}, {v(al)}, {v(oo+r)}")
        for r in range(16): A(f"v_sub_f32 {v(S+r)}, {v(S+r)}, {v(m)}")
        for r in range(16): A(f"v_exp_f32 {v(S+r)}, {v(S+r)}")
        for r in range(8): A(f"v_cvt_pk_bf16_f32 {v(P+r)}, {v(S+2*r)}, {v(S+2*r+1)}")
        A(f"v_mfma_f32_32x32x16_bf16 {v(oo,16)}, {v(V,4)}, {v(P,4)}, {v(oo,16)}")
        A(f"v_mfma_f32_32x32x16_bf16 {v(oo,16)}, {v(V+4,4)}, {v(P+4,4)}, {v(oo,16)}")
        A(f"s_sub_u32 {s(sCnt)}, {s(sCnt)}, 1")
        A(f"s_cmp_lg_u32 {s(sCnt)}, 0")
        A(f"s_cbranch_scc1 {name}_slow{t}")
        A("s_nop 15")
    A(f"{name}_fin:")
    A(f"s_lshl_b32 {s(sT0)}, {s(sQt)}, 5")
    A(f"s_add_u32 {s(sT0)}, {s(sT0)}, {s(sHead)}")
    A(f"s_lshl_b32 {s(sT0)}, {s(sT0)}, 10")
    A(f"s_add_u32 {s(sT0)}, {s(sT0)}, {WS_O}")
    A(f"s_add_u32 {s(sT1)}, {s(sT0)}, {32*1024}")
    A(f"v_rcp_f32 {v(O+8)}, {v(O+8)}")
    A(f"v_rcp_f32 {v(O+24)}, {v(O+24)}")
    for t in range(2):
        oo = O + 16 * t
        for r in range(8): A(f"v_mul_f32 {v(oo+r)}, {v(oo+8)}, {v(oo+r)}")
        for r in range(4): A(f"v_cvt_pk_bf16_f32 {v(oo+r)}, {v(oo+2*r)}, {v(oo+2*r+1)}")
        A(f"buffer_store_dwordx4 {v(oo,4)}, {v(vL16)}, {s(sWS,4)}, {s(sT0 if t == 0 else sT1)} offen")
    A(f"{name}_end:")
    A("s_endpgm")
    A(f"{name}_codeend:")
    loops = [f"{name}_loop", f"{name}_slow0", f"{name}_slow1"]
    n = A.fix_hazards(verbose=opts.get("verbose"), loops=loops)
    e = A.check_waits(loops=loops)
    assert e == 0
    print(f"{name}: {len(A.ins)} lines, {n} nop states inserted")
    return A.text(), kernel_desc(name, NV, 48, NV), f"kernel={name} grid=(256,1,1) block=(256,1,1) lds={4*RG}"
```

```python
from common import *

def gen_k3(name, opts=None):
    opts = opts or {}
    D = opts.get("depth", 12)
    A = Asm()
    sX, sWo, sWd, sWS, sOut, sC = 16, 20, 24, 28, 32, 36
    sWave, sTb, sCg, sT0, sT1, sT2, sL, sOa, sHa, sWoO, sWdO = 40, 41, 42, 43, 44, 45, 46, 47, 48, 49, 50
    vL16, vVo, vaW0, vaW1, vXo = 1, 2, 3, 4, 5
    XR = 8
    ACC = 16
    WF = 80
    ACT = 96
    NV = ACT + 8 * D
    REG = 17408 if D * 2048 < 17408 else D * 2048
    A(f"s_cmp_ge_u32 s2, 256")
    A(f"s_cbranch_scc1 {name}_end")
    A(f"s_load_dwordx2 s[4:5], s[0:1], 0")
    A(f"s_load_dwordx2 s[6:7], s[0:1], 16")
    A(f"s_load_dwordx4 s[8:11], s[0:1], 48")
    A(f"s_load_dwordx2 s[12:13], s[0:1], 72")
    if opts.get("prefetch", True):
        A(f"s_getpc_b64 {s(sC,2)}")
        A(f"{name}_pc:")
        A(f"s_and_b32 {s(sC+1)}, {s(sC+1)}, 0xffff")
        A(f"s_mov_b32 {s(sC+2)}, {name}_codeend-{name}_pc")
        A(f"s_mov_b32 {s(sC+3)}, 0x00020000")
        A(f"v_lshlrev_b32 v6, 7, v0")
        A(f"buffer_load_dword v7, v6, {s(sC,4)}, 0 offen", "dummy")
    A(f"v_lshrrev_b32 v16, 6, v0")
    A(f"v_and_b32 v17, 63, v0")
    A(f"s_and_b32 {s(sT0)}, s2, 7")
    A(f"v_readfirstlane_b32 {s(sWave)}, v16")
    A(f"s_lshr_b32 {s(sT1)}, s2, 3")
    A(f"s_lshl_b32 {s(sTb)}, {s(sT0)}, 2")
    A(f"s_and_b32 {s(sT0)}, {s(sT1)}, 3")
    A(f"s_add_u32 {s(sTb)}, {s(sTb)}, {s(sT0)}")
    A(f"s_lshr_b32 {s(sCg)}, {s(sT1)}, 2")
    A(f"s_mul_i32 {s(sL)}, {s(sWave)}, {REG}")
    A(f"s_lshl_b32 {s(sOa)}, {s(sTb)}, 16")
    A(f"s_lshl_b32 {s(sT0)}, {s(sWave)}, 13")
    A(f"s_add_u32 {s(sOa)}, {s(sOa)}, {s(sT0)}")
    A(f"s_add_u32 {s(sOa)}, {s(sOa)}, {WS_O}")
    A(f"s_mul_i32 {s(sHa)}, {s(sTb)}, {2*112*1024}")
    A(f"s_mul_i32 {s(sT0)}, {s(sWave)}, {28*1024}")
    A(f"s_add_u32 {s(sHa)}, {s(sHa)}, {s(sT0)}")
    A(f"s_add_u32 {s(sHa)}, {s(sHa)}, {WS_H}")
    A(f"s_lshl_b32 {s(sT1)}, {s(sCg)}, 7")
    A(f"s_lshl_b32 {s(sWoO)}, {s(sWave)}, 17")
    A(f"s_add_u32 {s(sWoO)}, {s(sWoO)}, {s(sT1)}")
    A(f"s_mul_i32 {s(sWdO)}, {s(sWave)}, {28*16*1024}")
    A(f"s_add_u32 {s(sWdO)}, {s(sWdO)}, {s(sT1)}")
    A(f"v_lshlrev_b32 {v(vL16)}, 4, v17")
    A(f"v_bfe_u32 v18, v17, 4, 1")
    A(f"v_lshlrev_b32 v19, 2, v18")
    A(f"v_and_b32 v20, 7, v17")
    A(f"v_xor_b32 v19, v19, v20")
    A(f"v_lshlrev_b32 v19, 4, v19")
    A(f"v_lshrrev_b32 v20, 3, v17")
    A(f"v_lshl_add_u32 {v(vVo)}, v20, 10, v19")
    A(f"v_bfe_u32 v20, v17, 2, 2")
    A(f"v_lshrrev_b32 v21, 5, v17")
    A(f"v_lshl_add_u32 v22, v21, 2, v20")
    A(f"v_lshlrev_b32 v22, 7, v22")
    A(f"v_lshl_add_u32 v22, v18, 5, v22")
    A(f"v_and_b32 v23, 3, v17")
    A(f"v_lshl_add_u32 v22, v23, 3, v22")
    A(f"v_add_u32 v22, {s(sL)}, v22")
    A(f"v_lshrrev_b32 v20, 1, v20")
    A(f"v_lshl_add_u32 {v(vaW0)}, v20, 6, v22")
    A(f"v_xor_b32 v20, 1, v20")
    A(f"v_lshl_add_u32 {v(vaW1)}, v20, 6, v22")
    A(f"v_lshrrev_b32 v20, 3, v0")
    A(f"v_and_b32 v21, 7, v0")
    A(f"v_lshlrev_b32 v21, 4, v21")
    A(f"v_lshl_add_u32 {v(vXo)}, v20, 10, v21")
    A(f"s_lshl_b32 {s(sT2)}, {s(sTb)}, 16")
    A(f"s_add_u32 {s(sT2)}, {s(sT2)}, {s(sT1)}")
    A("s_waitcnt lgkmcnt(0)")
    srd(A, sWS, 12, WS_SIZE)
    srd(A, sWo, 6, 512 * 1024)
    srd(A, sWd, 8, 1792 * 1024)
    srd(A, sX, 4, 2048 * 1024)
    srd(A, sOut, 10, 2048 * 1024)
    steps = [("d", k) for k in range(28)] + [("o", k) for k in range(8)]
    def loads(si):
        kind, k = steps[si]; slot = si % D; tag = f"s{si}"
        wsrd, wo = (sWo, sWoO) if kind == "o" else (sWd, sWdO)
        ab, tstride = (sOa, 32 * 1024) if kind == "o" else (sHa, 112 * 1024)
        return [[f"s_add_u32 m0, {s(sL)}, {slot*2048}", f"s_add_u32 {s(sT0)}, {s(wo)}, {k*16384}",
                 T(f"buffer_load_dwordx4 {v(vVo)}, {s(wsrd,4)}, {s(sT0)} offen lds", tag)],
                [f"s_add_u32 {s(sT0)}, {s(wo)}, {k*16384 + 8192 - 1024}",
                 T(f"buffer_load_dwordx4 {v(vVo)}, {s(wsrd,4)}, {s(sT0)} offen offset:1024 lds", tag)],
                [f"s_add_u32 {s(sT0)}, {s(ab)}, {k*1024}",
                 T(f"buffer_load_dwordx4 {v(ACT+8*slot,4)}, {v(vL16)}, {s(sWS,4)}, {s(sT0)} offen", tag)],
                [f"s_add_u32 {s(sT0)}, {s(ab)}, {k*1024 + tstride}",
                 T(f"buffer_load_dwordx4 {v(ACT+8*slot+4,4)}, {v(vL16)}, {s(sWS,4)}, {s(sT0)} offen", tag)]]
    def reads(si):
        slot = si % D; fs = WF + 8 * (si % 2)
        return [T(f"ds_read_b64_tr_b16 {v(fs + 4*ct + 2*rd, 2)}, {v(vaW0 if ct == 0 else vaW1)} offset:{slot*2048 + rd*1024}", f"f{si}")
                for ct in range(2) for rd in range(2)]
    for si in range(D):
        for g in loads(si): A.extend(g)
    A(f"buffer_load_dwordx4 {v(XR,4)}, {v(vXo)}, {s(sX,4)}, {s(sT2)} offen", "x")
    A(f"s_add_u32 {s(sT1)}, {s(sT2)}, 32768")
    A(f"buffer_load_dwordx4 {v(XR+4,4)}, {v(vXo)}, {s(sX,4)}, {s(sT1)} offen", "x")
    A.extend([WV("s0")] + reads(0))
    for si in range(len(steps)):
        slot = si % D; fs = WF + 8 * (si % 2)
        pre = []
        if si + 1 < len(steps): pre = [WV(f"s{si+1}")] + reads(si + 1)
        A.extend(pre)
        A.extend([WL(f"f{si}")])
        ld = loads(si + D) if si + D < len(steps) else [[], [], [], []]
        k = 0
        for ct in range(2):
            for tt in range(2):
                ac = ACC + 16 * (2 * ct + tt)
                c = "0" if si == 0 else v(ac, 16)
                A(f"v_mfma_f32_32x32x16_bf16 {v(ac,16)}, {v(fs+4*ct,4)}, {v(ACT+8*slot+4*tt,4)}, {c}")
                if k < 2: A.extend(ld[k])
                k += 1
        A.extend(ld[2] + ld[3])
    A(f"v_and_b32 v6, 31, v0")
    A(f"v_mul_u32_u24 v6, 272, v6")
    A(f"v_bfe_u32 v7, v0, 5, 1")
    A(f"v_lshl_add_u32 v6, v7, 4, v6")
    A(f"v_add_u32 v6, {s(sL)}, v6")
    for ct in range(2):
        for tt in range(2):
            ac = ACC + 16 * (2 * ct + tt)
            for q in range(4):
                A(f"ds_write_b128 v6, {v(ac+4*q,4)} offset:{tt*32*272 + ct*128 + q*32}")
    A(f"v_lshrrev_b32 v6, 3, v0")
    A(f"v_mul_u32_u24 v6, 272, v6")
    A(f"v_and_b32 v7, 7, v0")
    A(f"v_lshl_add_u32 v6, v7, 5, v6")
    A(f"v_add_u32 v7, {2*REG}, v6")
    A("s_waitcnt lgkmcnt(0)")
    A("s_barrier")
    PR = 96
    for j in range(2):
        for w in range(4):
            for hh in range(2):
                A(f"ds_read_b128 {v(PR + 32*j + 8*w + 4*hh, 4)}, v{6 + w//2} offset:{(w%2)*REG + j*32*272 + hh*16}", f"p{j}")
    A.extend([WV("x")])
    A(f"s_mov_b32 {s(sT0)}, 0xffff0000")
    for j in range(2):
        for r in range(4):
            A(f"v_lshlrev_b32 {v(16 + 8*j + 2*r)}, 16, {v(XR + 4*j + r)}")
            A(f"v_and_b32 {v(16 + 8*j + 2*r + 1)}, {s(sT0)}, {v(XR + 4*j + r)}")
    for j in range(2):
        A.extend([WL(f"p{j}")])
        b = PR + 32 * j
        for r in range(8): A(f"v_add_f32 {v(b+r)}, {v(b+r)}, {v(b+8+r)}")
        for r in range(8): A(f"v_add_f32 {v(b+16+r)}, {v(b+16+r)}, {v(b+24+r)}")
        for r in range(8): A(f"v_add_f32 {v(b+r)}, {v(b+r)}, {v(16+8*j+r)}")
        for r in range(8): A(f"v_add_f32 {v(b+r)}, {v(b+r)}, {v(b+16+r)}")
        for r in range(4): A(f"v_cvt_pk_bf16_f32 {v(b+r)}, {v(b+2*r)}, {v(b+2*r+1)}")
        A(f"buffer_store_dwordx4 {v(b,4)}, {v(vXo)}, {s(sOut,4)}, {s(sT2 if j == 0 else sT1)} offen")
    A(f"{name}_end:")
    A("s_endpgm")
    A(f"{name}_codeend:")
    resolve_waits(A)
    n = A.fix_hazards(verbose=opts.get("verbose"))
    e = A.check_waits()
    assert e == 0
    NVt = max(NV, PR + 64)
    NVt = (NVt + 3) // 4 * 4
    print(f"{name}: {len(A.ins)} lines, {n} nop states inserted")
    return A.text(), kernel_desc(name, NVt, 56, NVt), f"kernel={name} grid=(256,1,1) block=(256,1,1) lds={4*REG}"
```

```python
import sys, importlib
import k1, k2, k3
HDR = open("parallel_sum__mha_block__glu_gated_geglu__prompt.s.ref").read().split("; Override launch")[0]
def build(path, parts):
    o = [HDR.rstrip()]
    for t, d, l in parts: o.append(f"; @launch {l}")
    o.append('.amdgcn_target "amdgcn-amd-amdhsa--gfx950"')
    o.append(".text")
    seen = set()
    for t, d, l in parts:
        nm = l.split()[0].split("=")[1]
        if nm in seen: continue
        seen.add(nm)
        o.append(f".globl {nm}\n.p2align 8\n.type {nm},@function\n{nm}:")
        o.append(t)
    o.append('.section .rodata,"a"')
    seen = set()
    for t, d, l in parts:
        if d in seen: continue
        seen.add(d); o.append(d)
    open(path, "w").write("\n".join(o) + "\n")
if __name__ == "__main__":
    out = sys.argv[1] if len(sys.argv) > 1 else "parallel_sum__mha_block__glu_gated_geglu__prompt.s"
    opts = dict(kv.split("=") for kv in sys.argv[2:])
    o = {k: int(val) for k, val in opts.items()}
    build(out, [k1.gen_k1("k1_kernel", o), k2.gen_k2("k2_kernel", o), k3.gen_k3("k3_kernel", o)])
```

```python
from asmlib import *
import struct, math
WS_Q = 0
WS_K = 2 << 20
WS_V = 4 << 20
WS_O = 6 << 20
WS_H = 8 << 20
WS_SIZE = 16 << 20
def f2u(x): return struct.unpack("<I", struct.pack("<f", x))[0]
def hx(x): return f"0x{x & 0xffffffff:08x}"
LOG2E = 1.4426950408889634
QSCALE = 0.25 * LOG2E
GELU_A = -2.0 * LOG2E * math.sqrt(2.0 / math.pi)
GELU_B = GELU_A * 0.044715

def srd(A, d, base, size):
    A(f"s_mov_b32 {s(d)}, {s(base)}")
    A(f"s_and_b32 {s(d+1)}, {s(base+1)}, 0xffff")
    A(f"s_mov_b32 {s(d+2)}, {hx(size)}")
    A(f"s_mov_b32 {s(d+3)}, 0x00020000")

def code_prefetch(A, name, nthreads, vtmp, vdst, spair, endlabel):
    A(f"s_getpc_b64 {s(spair,2)}")
    A(f"v_lshlrev_b32 {v(vtmp)}, 7, v0")
    return

WS_DBG = 15 << 20
SSTAMP = 64
class Stamps:
    def __init__(self, A, on, kidx):
        self.A = A; self.on = on; self.n = 0; self.kidx = kidx
    def __call__(self, real=False):
        if not self.on: return []
        r = SSTAMP + 2 * self.n; self.n += 1
        return [f"{'s_memrealtime' if real else 's_memtime'} {s(r,2)}", "s_waitcnt lgkmcnt(0)"]
    def dump(self, sWS, sWave, vt, nwaves=4):
        if not self.on: return
        A = self.A
        A(f"s_mul_i32 s62, s2, {nwaves}")
        A(f"s_add_u32 s62, s62, {s(sWave)}")
        A(f"s_lshl_b32 s62, s62, 6")
        A(f"s_add_u32 s62, s62, {WS_DBG + self.kidx * 262144}")
        A(f"v_mov_b32 {v(vt+1)}, 0")
        for i in range(self.n):
            A(f"v_mov_b32 {v(vt)}, {s(SSTAMP + 2*i)}")
            A(f"buffer_store_dword {v(vt)}, {v(vt+1)}, {s(sWS,4)}, s62 offen offset:{4*i}")
```

```python
from common import *

def gen_k1(name, opts=None):
    opts = opts or {}
    A = Asm()
    sX, sW, sQ, sWS, sC = 16, 20, 24, 28, 32
    sWave, sTb, sCb, sTt = 36, 37, 38, 39
    sT0, sT1, sT2, sT3 = 40, 41, 42, 43
    sMask, sOnes = 44, 45
    sAg, sAl, sOg, sOl, sBg, sCg, sCl, sXg, sXl = 46, 47, 48, 49, 50, 51, 52, 53, 54
    sHo, sQo, sVo = 55, 56, 57
    vLane16, vPair, vOdd, vQkv, vaP, vaO, vaQ = 1, 2, 3, 4, 5, 6, 7
    vM, vGA, vGB, vGC = 8, 9, 10, 11
    vT = [12, 13, 14, 15]
    ACC = [16, 32, 48, 64, 80, 96, 112]
    XC = 128
    LDS_TOT = 163840
    RS_OFF = LDS_TOT - 512
    SZ_A, SZ_B, SZ_C = 20992, 16640, 24576
    UOFF = 8192 + 32
    ODD_G, ODD_U = 16640, 16640 + 2176

    A(f"s_cmp_ge_u32 s2, 256")
    A(f"s_cbranch_scc1 {name}_end")
    ST = Stamps(A, opts.get("stamps"), 0)
    A.extend(ST(True)); A.extend(ST())
    A(f"s_load_dwordx4 s[4:7], s[0:1], 0")
    A(f"s_load_dwordx4 s[8:11], s[0:1], 32")
    A(f"s_load_dwordx2 s[12:13], s[0:1], 72")
    if opts.get("prefetch", True):
        A(f"s_getpc_b64 {s(sC,2)}")
        A(f"{name}_pc:")
        A(f"s_and_b32 {s(sC+1)}, {s(sC+1)}, 0xffff")
        A(f"s_mov_b32 {s(sC+2)}, {name}_codeend-{name}_pc")
        A(f"s_mov_b32 {s(sC+3)}, 0x00020000")
        A(f"v_lshlrev_b32 v20, 7, v0")
        A(f"buffer_load_dword v21, v20, {s(sC,4)}, 0 offen", "dummy")
    A(f"v_lshrrev_b32 v16, 6, v0")
    A(f"v_and_b32 v17, 63, v0")
    A(f"s_and_b32 {s(sT0)}, s2, 7")
    A(f"v_readfirstlane_b32 {s(sWave)}, v16")
    A(f"s_lshr_b32 {s(sT1)}, s2, 3")
    A(f"s_and_b32 {s(sTb)}, {s(sT0)}, 1")
    A(f"s_lshl_b32 {s(sTb)}, {s(sTb)}, 3")
    A(f"s_and_b32 {s(sT2)}, {s(sT1)}, 7")
    A(f"s_add_u32 {s(sTb)}, {s(sTb)}, {s(sT2)}")
    A(f"s_lshr_b32 {s(sCb)}, {s(sT0)}, 1")
    A(f"s_lshl_b32 {s(sCb)}, {s(sCb)}, 2")
    A(f"s_lshr_b32 {s(sT2)}, {s(sT1)}, 3")
    A(f"s_add_u32 {s(sCb)}, {s(sCb)}, {s(sT2)}")
    A(f"s_lshl_b32 {s(sTt)}, {s(sTb)}, 2")
    A(f"s_add_u32 {s(sTt)}, {s(sTt)}, {s(sWave)}")
    A(f"s_lshl_b32 {s(sXg)}, {s(sTt)}, 15")
    A(f"s_lshl_b32 {s(sXl)}, {s(sWave)}, 15")
    for m in range(16):
        A(f"v_xor_b32 v{32+m}, {m}, v17")
        A(f"v_lshlrev_b32 v{32+m}, 4, v{32+m}")
        if m & ~3: A(f"v_add_u32 v{32+m}, {(m & ~3) * 1024}, v{32+m}")
    A("s_waitcnt lgkmcnt(0)")
    srd(A, sX, 4, 2048 * 1024)
    for b in range(2):
        for g in range(4):
            A(f"s_add_u32 m0, {s(sXl)}, {b * 16384 + g * 4096}")
            if g == 0:
                A(f"s_add_u32 {s(sT0)}, {s(sXg)}, {b * 16384}")
            for i in range(4):
                A(f"buffer_load_dwordx4 v{32 + g * 4 + i}, {s(sX,4)}, {s(sT0)} offen offset:{i * 1024} lds", "x")
    A(f"s_cmp_ge_u32 {s(sWave)}, 2")
    A(f"s_cselect_b32 {s(sW)}, s10, s8")
    A(f"s_cselect_b32 {s(sW+1)}, s11, s9")
    A(f"s_cselect_b32 {s(sT3)}, 1, 0")
    A(f"s_and_b32 {s(sW+1)}, {s(sW+1)}, 0xffff")
    A(f"s_mov_b32 {s(sW+2)}, {512 * 3584}")
    A(f"s_mov_b32 {s(sW+3)}, 0x00020000")
    srd(A, sQ, 6, 512 * 3072)
    srd(A, sWS, 12, WS_SIZE)
    A(f"s_and_b32 {s(sT2)}, {s(sWave)}, 1")
    A(f"s_mul_i32 {s(sT0)}, {s(sCb)}, 224")
    A(f"s_lshl_b32 {s(sT1)}, {s(sT2)}, 6")
    A(f"s_add_u32 {s(sAg)}, {s(sT0)}, {s(sT1)}")
    A(f"s_mul_i32 {s(sAl)}, {s(sT3)}, {UOFF}")
    A(f"s_lshl_b32 {s(sT1)}, {s(sT2)}, 12")
    A(f"s_add_u32 {s(sAl)}, {s(sAl)}, {s(sT1)}")
    A(f"s_mul_i32 {s(sT1)}, {s(sT2)}, {32 * 3584}")
    A(f"s_add_u32 {s(sOg)}, {s(sT0)}, {s(sT1)}")
    A(f"s_add_u32 {s(sOg)}, {s(sOg)}, 192")
    A(f"s_mul_i32 {s(sOl)}, {s(sT3)}, 2176")
    A(f"s_lshl_b32 {s(sT1)}, {s(sT2)}, 10")
    A(f"s_add_u32 {s(sOl)}, {s(sOl)}, {s(sT1)}")
    A(f"s_add_u32 {s(sOl)}, {s(sOl)}, {ODD_G}")
    A(f"s_mul_i32 {s(sT1)}, {s(sT2)}, {64 * 3584}")
    A(f"s_add_u32 {s(sBg)}, {s(sT0)}, {s(sT1)}")
    A(f"s_add_u32 {s(sBg)}, {s(sBg)}, 128")
    A(f"s_mul_i32 {s(sCg)}, {s(sWave)}, {32 * 3072}")
    A(f"s_lshl_b32 {s(sT1)}, {s(sCb)}, 6")
    A(f"s_add_u32 {s(sCg)}, {s(sCg)}, {s(sT1)}")
    A(f"s_lshl_b32 {s(sCl)}, {s(sWave)}, 11")
    A(f"s_mov_b32 {s(sMask)}, 0xffff0000")
    A(f"s_mov_b32 {s(sOnes)}, 0x3f803f80")
    A(f"v_lshlrev_b32 {v(vLane16)}, 4, v17")
    A(f"v_lshrrev_b32 v18, 2, v17")
    A(f"v_and_b32 v19, 3, v17")
    A(f"v_lshlrev_b32 v19, 4, v19")
    A(f"v_mul_u32_u24 {v(vPair)}, 3584, v18")
    A(f"v_add_u32 {v(vPair)}, {v(vPair)}, v19")
    A(f"v_mul_u32_u24 {v(vQkv)}, 3072, v18")
    A(f"v_add_u32 {v(vQkv)}, {v(vQkv)}, v19")
    A(f"v_lshrrev_b32 v18, 1, v17")
    A(f"v_and_b32 v19, 1, v17")
    A(f"v_lshlrev_b32 v19, 4, v19")
    A(f"v_mul_u32_u24 {v(vOdd)}, 3584, v18")
    A(f"v_add_u32 {v(vOdd)}, {v(vOdd)}, v19")

    chunks = []
    for c in range(8): chunks.append(("A", 4 * c, 4, SZ_A))
    for c in range(4): chunks.append(("B", 8 * c, 8, SZ_B))
    for c in range(4): chunks.append(("C", 8 * c, 8, SZ_C))
    def dma_groups(ci, base):
        p, s0, ns, _ = chunks[ci]
        row0 = s0 * 16
        G = []
        tag = f"c{ci}"
        if p == "A":
            g = [f"s_add_u32 m0, {s(sAl)}, {base}"]
            for i in range(4):
                g += [f"s_add_u32 {s(sT0)}, {s(sAg)}, {(row0 + 16 * i) * 3584 - 1024 * i}",
                      T(f"buffer_load_dwordx4 {v(vPair)}, {s(sW,4)}, {s(sT0)} offen offset:{1024 * i} lds", tag)]
                G.append(g); g = []
            G.append([f"s_add_u32 m0, {s(sOl)}, {base}", f"s_add_u32 {s(sT0)}, {s(sOg)}, {row0 * 3584}",
                      T(f"buffer_load_dwordx4 {v(vOdd)}, {s(sW,4)}, {s(sT0)} offen lds", tag)])
        elif p == "B":
            g = [f"s_add_u32 m0, {s(sAl)}, {base}"]
            for i in range(4):
                g += [f"s_add_u32 {s(sT0)}, {s(sBg)}, {(row0 + 16 * i) * 3584 - 1024 * i}",
                      T(f"buffer_load_dwordx4 {v(vPair)}, {s(sW,4)}, {s(sT0)} offen offset:{1024 * i} lds", tag)]
                G.append(g); g = []
        else:
            for t in range(3):
                g = [f"s_add_u32 m0, {s(sCl)}, {base + t * 8192}"]
                for i in range(2):
                    g += [f"s_add_u32 {s(sT0)}, {s(sCg)}, {(row0 + 16 * i) * 3072 + t * 1024 - 1024 * i}",
                          T(f"buffer_load_dwordx4 {v(vQkv)}, {s(sQ,4)}, {s(sT0)} offen offset:{1024 * i} lds", tag)]
                    G.append(g); g = []
        return G
    base = {0: 131072}
    live = {0: (131072, SZ_A)}
    issue_at = {}
    ptr = 0; nxt = 1
    for k in range(len(chunks)):
        if k >= 2: live.pop(k - 2)
        while nxt < len(chunks):
            sz = chunks[nxt][3]
            placed = None
            for cand in (ptr, 0):
                if cand + sz <= RS_OFF and all(cand + sz <= b or cand >= b + z for b, z in live.values()):
                    placed = cand; break
            if placed is None: break
            base[nxt] = placed; live[nxt] = (placed, sz); ptr = placed + sz
            issue_at.setdefault(k, []).append(nxt); nxt += 1
    assert len(base) == len(chunks)
    if opts.get("verbose"): print("K1 ring:", base, issue_at)

    for g in dma_groups(0, base[0]): A.extend(g)
    A(f"v_and_b32 v18, 31, v17")
    A(f"v_lshrrev_b32 v19, 5, v17")
    A(f"v_and_b32 v22, 15, v17")
    A(f"v_xor_b32 v22, v22, v19")
    A(f"v_lshlrev_b32 v23, 10, v18")
    A(f"v_add_u32 v23, {s(sXl)}, v23")
    for e in range(8):
        A(f"v_xor_b32 v{48+e}, {2*e}, v22")
        A(f"v_lshl_add_u32 v{48+e}, v{48+e}, 4, v23")
    A(f"v_bfe_u32 v24, v17, 2, 2")
    A(f"v_lshl_add_u32 v24, v19, 3, v24")
    A(f"v_and_b32 v25, 3, v17")
    A(f"v_lshlrev_b32 v25, 3, v25")
    A(f"v_bfe_u32 v26, v17, 4, 1")
    A(f"v_lshl_add_u32 v27, v24, 6, v25")
    A(f"v_mul_u32_u24 v28, {UOFF}, v26")
    A(f"v_add_u32 {v(vaP)}, v27, v28")
    A(f"v_lshl_add_u32 {v(vaQ)}, v26, 5, v27")
    A(f"v_lshl_add_u32 v27, v24, 5, v25")
    A(f"v_mul_u32_u24 v28, 2176, v26")
    A(f"v_add_u32 {v(vaO)}, v27, v28")
    abase = {vaP: 0, vaO: 0, vaQ: 0}
    def lds_ref(reg, addr, pre):
        off = addr - abase[reg]
        if off < 0 or off > 65535 - 8:
            nb = addr & ~0x3ff
            pre.append(f"v_add_u32 {v(reg)}, {hx(nb - abase[reg])}, {v(reg)}")
            abase[reg] = nb; off = addr - nb
        return off
    A(f"s_mul_i32 {s(sHo)}, {s(sTt)}, 112")
    A(f"s_mul_i32 {s(sT0)}, {s(sCb)}, 7")
    A(f"s_add_u32 {s(sHo)}, {s(sHo)}, {s(sT0)}")
    A(f"s_lshl_b32 {s(sHo)}, {s(sHo)}, 10")
    A(f"s_add_u32 {s(sHo)}, {s(sHo)}, {WS_H}")
    A(f"s_lshl_b32 {s(sQo)}, {s(sCb)}, 17")
    A(f"s_lshl_b32 {s(sT0)}, {s(sTt)}, 10")
    A(f"s_add_u32 {s(sQo)}, {s(sQo)}, {s(sT0)}")
    NA = 8
    SX, SQ = 64, 72
    for i in range(16): A(f"v_mov_b32 v{64+i}, 0")
    A.extend(ST())
    A.extend([WV("x")])
    A.extend(ST())
    def xread(st): return T(f"ds_read_b128 {v(XC + 4*st, 4)}, v{48 + st % 8} offset:{(st // 8) * 256}", f"x{st//8}")
    def stats(st):
        o = []
        for r in range(4):
            x = XC + 4 * st + r; k = (4 * st + r) % NA
            o.append(f"v_dot2_f32_bf16 v{SX+k}, v{x}, {s(sOnes)}, v{SX+k}")
            o.append(f"v_dot2_f32_bf16 v{SQ+k}, v{x}, v{x}, v{SQ+k}")
        return o
    for st in range(0, 14): A.extend([xread(st)])
    A.extend([WL("x0")])
    for st in range(0, 8):
        A.extend(stats(st))
        if 14 + st < 22: A.extend([xread(14 + st)])
    A.extend([WL("x1")])
    for st in range(22, 29): A.extend([xread(st)])
    for st in range(8, 12): A.extend(stats(st))
    for st in range(29, 32): A.extend([xread(st)])
    for st in range(12, 16): A.extend(stats(st))
    A("s_waitcnt vmcnt(0) lgkmcnt(0)")
    A("s_barrier")
    A.extend(ST())
    pend = []
    for ci in issue_at.get(0, []): pend += dma_groups(ci, base[ci])
    first_burst = pend[:12]; pend = pend[12:]
    fl = [(4, t) for st in range(16, 32) for t in stats(st)]
    A.extend(interleave(first_burst, fl))

    FR = 20
    steps = [("A", k) for k in range(32)] + [("B", k) for k in range(32)] + [("C", k) for k in range(32)]
    def chunk_of(gi):
        p, k = steps[gi]
        for ci, (pp, s0, ns, _) in enumerate(chunks):
            if pp == p and s0 <= k < s0 + ns: return ci
    def frag_reads(gi):
        p, k = steps[gi]; ci = chunk_of(gi); ls = k - chunks[ci][1]; b = base[ci]
        fs = (gi % 3) * FR
        out = []
        if p == "A": tl = [(vaP, 0, 1024, 256), (vaP, 32, 1024, 256), (vaP, 4096, 1024, 256), (vaP, 4096 + 32, 1024, 256), (vaO, ODD_G, 512, 128)]
        elif p == "B": tl = [(vaP, 0, 1024, 256), (vaP, 32, 1024, 256)]
        else: tl = [(vaQ, 0, 1024, 256), (vaQ, 8192, 1024, 256), (vaQ, 16384, 1024, 256)]
        for ti, (reg, o, sp, rp) in enumerate(tl):
            for rd in range(2):
                pre = []
                off = lds_ref(reg, b + o + ls * sp + rd * rp, pre)
                out.append(pre + [T(f"ds_read_b64_tr_b16 {a(fs + 4*ti + 2*rd, 2)}, {v(reg)} offset:{off}", f"f{gi}")])
        return out
    for g in frag_reads(0) + frag_reads(1): A.extend(g)

    for base_r in (SX, SQ):
        for st_ in (4, 2, 1):
            for i in range(st_): A(f"v_add_f32 v{base_r+i}, v{base_r+i}, v{base_r+i+st_}")
    A(f"v_mov_b32 v65, v64")
    A(f"v_mov_b32 v73, v72")
    A(f"v_permlane32_swap_b32 v64, v65")
    A(f"v_permlane32_swap_b32 v72, v73")
    A(f"v_add_f32 v64, v64, v65")
    A(f"v_add_f32 v72, v72, v73")
    A(f"v_mul_f32 v64, {hx(f2u(1/512))}, v64")
    A(f"v_mul_f32 v72, {hx(f2u(1/512))}, v72")
    A(f"v_cvt_pk_bf16_f32 {v(vM)}, v64, v64")
    A(f"v_fma_f32 v72, -v64, v64, v72")
    A(f"v_and_b32 {v(vM)}, {s(sMask)}, {v(vM)}")
    A(f"v_max_f32 v72, 0, v72")
    def center(st):
        o = []
        for r in range(4):
            x = XC + 4 * st + r; t0, t1 = vT[(r % 2) * 2], vT[(r % 2) * 2 + 1]
            o += [f"v_lshlrev_b32 {v(t0)}, 16, {v(x)}", f"v_and_b32 {v(t1)}, {s(sMask)}, {v(x)}",
                  f"v_sub_f32 {v(t0)}, {v(t0)}, {v(vM)}", f"v_sub_f32 {v(t1)}, {v(t1)}, {v(vM)}",
                  f"v_cvt_pk_bf16_f32 {v(x)}, {v(t0)}, {v(t1)}"]
        return o
    A.extend(center(0))
    A(f"v_cvt_pk_bf16_f32 v72, v72, v72")
    A(f"v_and_b32 v72, {s(sMask)}, v72")
    A(f"v_add_f32 v72, {hx(f2u(1e-5))}, v72")
    A(f"v_cvt_pk_bf16_f32 v72, v72, v72")
    A(f"v_and_b32 v72, {s(sMask)}, v72")
    A(f"v_sqrt_f32 v72, v72")
    A(f"s_nop 0")
    A(f"v_cvt_pk_bf16_f32 v72, v72, v72")
    A(f"v_and_b32 v72, {s(sMask)}, v72")
    A(f"v_rcp_f32 v73, v72")
    A(f"v_mul_f32 {v(vGC)}, v72, v72")
    A(f"v_mul_f32 {v(vGA)}, {hx(f2u(GELU_A))}, v73")
    A(f"v_mul_f32 v74, v73, v73")
    A(f"v_mul_f32 v74, v74, v73")
    A(f"v_mul_f32 {v(vGB)}, {hx(f2u(GELU_B))}, v74")
    A(f"v_accvgpr_write_b32 a60, v73")
    A(f"v_and_b32 v74, 31, v0")
    A(f"v_lshlrev_b32 v74, 2, v74")
    A(f"s_lshl_b32 {s(sT1)}, {s(sWave)}, 7")
    A(f"s_add_u32 {s(sT1)}, {s(sT1)}, {RS_OFF}")
    A(f"v_add_u32 v74, {s(sT1)}, v74")
    A(f"ds_write_b32 v74, v73", "f1")

    def gelu(acc, unit):
        o = []
        for j0 in range(0, 8, 2):
            pr = [(acc + j0, acc + 8 + j0, vT[0]), (acc + j0 + 1, acc + 9 + j0, vT[1])]
            if (j0 // 2) % 2: pr = [(pr[0][0], pr[0][1], vT[2]), (pr[1][0], pr[1][1], vT[3])]
            for G, U, t in pr: o.append(f"v_mul_f32 {v(t)}, {v(G)}, {v(G)}")
            for G, U, t in pr: o.append(f"v_fma_f32 {v(t)}, {v(t)}, {v(vGB)}, {v(vGA)}")
            for G, U, t in pr: o.append(f"v_mul_f32 {v(t)}, {v(G)}, {v(t)}")
            for G, U, t in pr: o.append(f"v_exp_f32 {v(t)}, {v(t)}")
            for G, U, t in pr: o.append(f"v_mul_f32 {v(U)}, {v(G)}, {v(U)}")
            for G, U, t in pr: o.append(f"v_fma_f32 {v(t)}, {v(t)}, {v(vGC)}, {v(vGC)}")
            for G, U, t in pr: o.append(f"v_rcp_f32 {v(t)}, {v(t)}")
            o.append("s_nop 0") if False else None
            for G, U, t in pr: o.append(f"v_mul_f32 {v(U)}, {v(U)}, {v(t)}")
            o.append(f"v_cvt_pk_bf16_f32 {v(acc + j0 // 2)}, {v(acc + 8 + j0)}, {v(acc + 9 + j0)}")
        o.append(f"s_add_u32 {s(sT1)}, {s(sHo)}, {unit * 1024}")
        o.append(f"buffer_store_dwordx4 {v(acc, 4)}, {v(vLane16)}, {s(sWS,4)}, {s(sT1)} offen")
        return o
    optq = {"B": gelu(ACC[0], 0) + gelu(ACC[1], 1) + gelu(ACC[2], 2),
            "C": gelu(ACC[3], 3) + gelu(ACC[4], 6) + gelu(ACC[5], 4) + gelu(ACC[6], 5)}
    optpos = {"B": 0, "C": 0}
    for gi, (p, k) in enumerate(steps):
        ci = chunk_of(gi); ls = k - chunks[ci][1]; ns = chunks[ci][2]
        fs = (gi % 3) * FR
        accs = {"A": ACC[0:5], "B": ACC[5:7], "C": ACC[0:3]}[p]
        mains = []
        for ti, ac in enumerate(accs):
            c = "0" if k == 0 else v(ac, 16)
            w = a(fs + 4 * ti, 4); x = v(XC + 4 * k, 4)
            if p == "C" and ti == 2: m = f"v_mfma_f32_32x32x16_bf16 {v(ac,16)}, {x}, {w}, {c}"
            else: m = f"v_mfma_f32_32x32x16_bf16 {v(ac,16)}, {w}, {x}, {c}"
            mains.append([m])
        mains[0].insert(0, WL(f"f{gi}"))
        if k == 0 or gi == 8: mains[0] = ST() + mains[0]
        if ls == ns - 2 and ci + 1 < len(chunks):
            mains[0] += [WV(f"c{ci+1}"), "s_barrier"]
            for cj in issue_at.get(ci + 1, []): pend += dma_groups(cj, base[cj])
        rd = frag_reads(gi + 2) if gi + 2 < len(steps) else []
        fill = []
        if p == "A" and k + 1 < 32: fill += center(k + 1)
        if p in optq:
            q = optq[p]; lo = optpos[p]
            hi = 0 if k == 0 else min(len(q), (len(q) * k + 29) // 30)
            fill += q[lo:hi]; optpos[p] = max(lo, hi)
        ndma = 2 if p == "A" else 1
        dm = []
        for _ in range(ndma):
            if pend: dm.append(pend.pop(0))
        n = len(mains)
        for i, g in enumerate(rd): mains[min(n - 1, i * n // len(rd))] += g
        for i, g in enumerate(dm): mains[(2 * i + 1) % n] += g
        A.extend(interleave(mains, [(cost(t), t) for t in fill]))
    assert not pend
    for p in optq: assert optpos[p] == len(optq[p])
    A.extend(ST())
    A(f"v_accvgpr_read_b32 {v(vM)}, a60")
    A(f"v_lshrrev_b32 v64, 5, v0")
    A(f"v_and_b32 v64, 1, v64")
    A(f"v_lshlrev_b32 v65, 4, v64")
    A(f"s_lshl_b32 {s(sT1)}, {s(sWave)}, 7")
    A(f"s_add_u32 {s(sT1)}, {s(sT1)}, {RS_OFF}")
    A(f"v_add_u32 v65, {s(sT1)}, v65")
    for q in range(4): A(f"ds_read_b128 {v(68 + 4*q, 4)}, v65 offset:{32*q}", "rs")
    A(f"v_mul_f32 {v(vGA)}, {hx(f2u(QSCALE))}, {v(vM)}")
    A(f"v_bfe_u32 v66, v0, 4, 1")
    A(f"v_lshlrev_b32 v66, 16, v66")
    A(f"v_lshl_add_u32 v66, v64, 8, v66")
    A(f"v_and_b32 v67, 15, v0")
    A(f"v_lshl_add_u32 v66, v67, 4, v66")
    for ti, (sc, off) in enumerate(((vGA, WS_Q), (vM, WS_K))):
        ac = ACC[ti]
        for hh in range(2):
            for r in range(8): A(f"v_mul_f32 {v(ac + 8*hh + r)}, {v(sc)}, {v(ac + 8*hh + r)}")
            for r in range(4): A(f"v_cvt_pk_bf16_f32 {v(ac + 8*hh + r)}, {v(ac + 8*hh + 2*r)}, {v(ac + 8*hh + 2*r + 1)}")
            A(f"s_add_u32 {s(sT1)}, {s(sQo)}, {off + hh * 65536}")
            A(f"buffer_store_dwordx4 {v(ac + 8*hh, 4)}, {v(vLane16)}, {s(sWS,4)}, {s(sT1)} offen")
    A.extend([WL("rs")])
    ac = ACC[2]
    A(f"s_add_u32 {s(sT1)}, {s(sQo)}, {WS_V}")
    for g in range(2):
        for r in range(8): A(f"v_mul_f32 {v(ac + 8*g + r)}, {v(68 + 8*g + r)}, {v(ac + 8*g + r)}")
        for r in range(4): A(f"v_cvt_pk_bf16_f32 {v(ac + 8*g + r)}, {v(ac + 8*g + 2*r)}, {v(ac + 8*g + 2*r + 1)}")
        A(f"buffer_store_dwordx4 {v(ac + 8*g, 4)}, v66, {s(sWS,4)}, {s(sT1)} offen offset:{512*g}")
    if ST.on:
        A("s_waitcnt vmcnt(0)")
        A.extend(ST()); A.extend(ST(True)); ST.dump(sWS, sWave, 64)
    A(f"{name}_end:")
    A("s_endpgm")
    A(f"{name}_codeend:")
    resolve_waits(A)
    n = A.fix_hazards(verbose=opts.get("verbose"))
    e = A.check_waits()
    assert e == 0
    print(f"{name}: {len(A.ins)} lines, {n} nop states inserted")
    return A.text(), kernel_desc(name, 256 + 64, 96, 256), f"kernel={name} grid=(256,1,1) block=(256,1,1) lds={LDS_TOT}"
```

```python
from common import *

def gen_k2(name, opts=None):
    opts = opts or {}
    A = Asm()
    sWS, sC = 16, 20
    sWave, sHead, sQb, sT0, sT1, sKo, sVo, sCnt, sQh, sKh = 24, 25, 26, 27, 28, 29, 30, 31, 32, 33
    sEx = 34
    sQt = 36
    sOk = 38
    sOk2 = 40
    vL16, vVo = 1, 2
    Q = 4
    P = 20
    S = 36
    O = 68
    K = 132
    V = 148
    vT = 180
    NV = 184
    A(f"s_cmp_ge_u32 s2, 256")
    A(f"s_cbranch_scc1 {name}_end")
    ST = Stamps(A, opts.get("stamps"), 1)
    A.extend(ST(True)); A.extend(ST())
    A(f"s_load_dwordx2 s[4:5], s[0:1], 72")
    if opts.get("prefetch", True):
        A(f"s_getpc_b64 {s(sC,2)}")
        A(f"{name}_pc:")
        A(f"s_and_b32 {s(sC+1)}, {s(sC+1)}, 0xffff")
        A(f"s_mov_b32 {s(sC+2)}, {name}_codeend-{name}_pc")
        A(f"s_mov_b32 {s(sC+3)}, 0x00020000")
        A(f"v_lshlrev_b32 v3, 7, v0")
        A(f"buffer_load_dword v{vT+3}, v3, {s(sC,4)}, 0 offen", "dummy")
    A(f"v_lshrrev_b32 v3, 6, v0")
    A(f"s_and_b32 {s(sT0)}, s2, 7")
    A(f"v_readfirstlane_b32 {s(sWave)}, v3")
    A(f"s_lshr_b32 {s(sT1)}, s2, 3")
    A(f"s_lshl_b32 {s(sHead)}, {s(sT0)}, 2")
    A(f"s_and_b32 {s(sT0)}, {s(sT1)}, 3")
    A(f"s_add_u32 {s(sHead)}, {s(sHead)}, {s(sT0)}")
    A(f"s_lshr_b32 {s(sQb)}, {s(sT1)}, 2")
    A(f"s_and_b32 {s(sQh)}, {s(sWave)}, 1")
    A(f"s_lshr_b32 {s(sKh)}, {s(sWave)}, 1")
    A(f"v_and_b32 {v(vL16)}, 63, v0")
    A(f"v_lshrrev_b32 v3, 5, {v(vL16)}")
    A(f"v_and_b32 {v(vVo)}, 15, v0")
    A(f"v_lshlrev_b32 {v(vVo)}, 4, {v(vVo)}")
    A(f"v_lshl_add_u32 {v(vVo)}, v3, 8, {v(vVo)}")
    A(f"v_lshlrev_b32 {v(vL16)}, 4, {v(vL16)}")
    A(f"s_lshl_b32 {s(sT0)}, {s(sHead)}, 16")
    A(f"s_lshl_b32 {s(sT1)}, {s(sKh)}, 15")
    A(f"s_add_u32 {s(sKo)}, {s(sT0)}, {s(sT1)}")
    A(f"s_add_u32 {s(sVo)}, {s(sKo)}, {WS_V}")
    A(f"s_add_u32 {s(sKo)}, {s(sKo)}, {WS_K}")
    A(f"s_lshl_b32 {s(sQt)}, {s(sQb)}, 3")
    A(f"s_lshl_b32 {s(sT1)}, {s(sQh)}, 2")
    A(f"s_add_u32 {s(sQt)}, {s(sQt)}, {s(sT1)}")
    A(f"s_lshl_b32 {s(sT1)}, {s(sKh)}, 1")
    A(f"s_add_u32 {s(sQt)}, {s(sQt)}, {s(sT1)}")
    A(f"s_xor_b32 {s(sT1)}, {s(sQt)}, 2")
    A(f"s_lshl_b32 {s(sT1)}, {s(sT1)}, 10")
    A(f"s_add_u32 {s(sT1)}, {s(sT1)}, {s(sT0)}")
    A(f"s_lshl_b32 {s(sCnt)}, {s(sQt)}, 10")
    A(f"s_add_u32 {s(sT0)}, {s(sT0)}, {s(sCnt)}")
    A(f"s_mov_b32 {s(sEx)}, 0x0000ffff")
    A(f"s_mov_b32 {s(sEx+1)}, 0x0000ffff")
    for i in range(32): A(f"v_mov_b32 {v(V+i)}, 0x3f803f80")
    A("s_waitcnt lgkmcnt(0)")
    srd(A, sWS, 4, WS_SIZE)
    def kv_loads(b, off):
        return [f"buffer_load_dwordx4 {v(K+4*b,4)}, {v(vL16)}, {s(sWS,4)}, {s(sKo)} offen offset:{off}",
                f"s_mov_b64 exec, {s(sEx,2)}",
                f"buffer_load_dwordx4 {v(V+8*b,4)}, {v(vVo)}, {s(sWS,4)}, {s(sVo)} offen offset:{off}",
                f"buffer_load_dwordx4 {v(V+8*b+4,4)}, {v(vVo)}, {s(sWS,4)}, {s(sVo)} offen offset:{off+512}",
                f"s_mov_b64 exec, -1"]
    A(f"buffer_load_dwordx4 {v(Q,4)}, {v(vL16)}, {s(sWS,4)}, {s(sT0)} offen")
    A.extend(kv_loads(0, 0))
    A(f"buffer_load_dwordx4 {v(Q+4,4)}, {v(vL16)}, {s(sWS,4)}, {s(sT0)} offen offset:1024")
    A(f"buffer_load_dwordx4 {v(Q+8,4)}, {v(vL16)}, {s(sWS,4)}, {s(sT1)} offen")
    A(f"buffer_load_dwordx4 {v(Q+12,4)}, {v(vL16)}, {s(sWS,4)}, {s(sT1)} offen offset:1024")
    for b in range(1, 3): A.extend(kv_loads(b, 1024 * b))
    for i in range(64): A(f"v_mov_b32 {v(O+i)}, 0")
    for i in range(8): A(f"v_mov_b32 {v(P+8+i)}, 0")
    A(f"s_mov_b32 {s(sCnt)}, 8")
    A.extend(ST())
    A("s_waitcnt vmcnt(6)")
    A.extend(ST())
    A(f"v_mfma_f32_32x32x16_bf16 {v(S,16)}, {v(K,4)}, {v(Q,4)}, 0")
    A(f"s_nop 7")
    A(f"s_nop 3")
    A(f".p2align 3")
    A(f"{name}_loop:")
    def pv(up):
        pp = P + 8 * (up % 2); oo = O + 16 * (up % 4); vv = V + 8 * (up // 4)
        return (f"v_mfma_f32_32x32x16_bf16 {v(oo,16)}, {v(vv,4)}, {v(pp,4)}, {v(oo,16)}",
                f"v_mfma_f32_32x32x16_bf16 {v(oo,16)}, {v(vv+4,4)}, {v(pp+4,4)}, {v(oo,16)}")
    for u in range(16):
        kt, i = u // 4, u % 4
        sc, pc = S + 16 * (u % 2), P + 8 * (u % 2)
        un = (u + 1) % 16; up = (u - 1) % 16
        mS = f"v_mfma_f32_32x32x16_bf16 {v(S + 16*(un%2),16)}, {v(K + 4*(un//4),4)}, {v(Q + 4*(un%4),4)}, 0"
        mA, mB = pv(up)
        e = [f"v_exp_f32 {v(sc+r)}, {v(sc+r)}" for r in range(16)]
        c = [f"v_cvt_pk_bf16_f32 {v(pc+r)}, {v(sc+2*r)}, {v(sc+2*r+1)}" for r in range(8)]
        seq = [e[0], e[1], e[2], c[0], e[3], e[4], c[1], e[5], e[6], c[2], e[7], e[8], c[3], e[9], e[10], c[4],
               e[11], e[12], c[5], e[13], e[14], e[15], c[6], c[7]]
        pre = ["s_waitcnt vmcnt(6)"] if i == 3 else []
        body = pre + [mS] + seq[0:8] + [mA] + seq[8:16] + [mB] + seq[16:24]
        if i == 1:
            b = (kt - 1) % 4
            ex = kv_loads(b, 1024 * b)
            j = body.index(e[1]); body[j + 1:j + 1] = [ex[0]]
            j = body.index(e[4]); body[j + 1:j + 1] = ex[1:5]
            if kt == 0:
                j = body.index(e[8]); body[j + 1:j + 1] = [f"s_add_u32 {s(sKo)}, {s(sKo)}, 4096"]
                j = body.index(e[10]); body[j + 1:j + 1] = [f"s_add_u32 {s(sVo)}, {s(sVo)}, 4096"]
        if u == 15:
            j = body.index(e[12]); body[j + 1:j + 1] = [f"s_sub_u32 {s(sCnt)}, {s(sCnt)}, 1"]
            j = body.index(e[14]); body[j + 1:j + 1] = [f"s_cmp_lg_u32 {s(sCnt)}, 0"]
        A.extend(body)
    A(f"s_cbranch_scc1 {name}_loop")
    A.extend(pv(15))
    A.extend(ST())
    RG = 4608
    A(f"s_mul_i32 {s(sT0)}, {s(sWave)}, {RG}")
    A(f"s_xor_b32 {s(sT1)}, {s(sWave)}, 2")
    A(f"s_mul_i32 {s(sT1)}, {s(sT1)}, {RG}")
    A(f"v_add_u32 v{vT}, {s(sT0)}, {v(vL16)}")
    A(f"v_lshrrev_b32 v{vT+1}, 2, {v(vL16)}")
    A(f"v_add_u32 v{vT+2}, {s(sT1)}, v{vT+1}")
    A(f"v_add_u32 v{vT+1}, {s(sT0)}, v{vT+1}")
    for t in range(2):
        oo = O + 16 * (2 + t)
        A(f"ds_write_b128 v{vT}, {v(oo,4)} offset:{t*2304}")
        A(f"ds_write_b128 v{vT}, {v(oo+4,4)} offset:{t*2304+1024}")
        A(f"ds_write_b32 v{vT+1}, {v(oo+8)} offset:{t*2304+2048}")
    A(f"v_add_u32 v{vT}, {s(sT1)}, {v(vL16)}")
    A("s_waitcnt vmcnt(0) lgkmcnt(0)")
    A("s_barrier")
    for t in range(2):
        A(f"ds_read_b128 {v(S+16*t,4)}, v{vT} offset:{t*2304}")
        A(f"ds_read_b128 {v(S+16*t+4,4)}, v{vT} offset:{t*2304+1024}")
        A(f"ds_read_b32 {v(S+16*t+8)}, v{vT+2} offset:{t*2304+2048}")
    A(f"s_mov_b32 {s(sT0)}, {hx(f2u(2.0**-40))}")
    A(f"s_mov_b32 {s(sT1)}, {hx(f2u(2.0**40))}")
    A("s_waitcnt lgkmcnt(0)")
    for t in range(2):
        for r in range(9): A(f"v_add_f32 {v(O+16*t+r)}, {v(O+16*t+r)}, {v(S+16*t+r)}")
    A(f"v_cmp_le_f32 {s(sOk,2)}, {s(sT0)}, {v(O+8)}")
    A(f"v_cmp_ge_f32 {s(sOk2,2)}, {s(sT1)}, {v(O+8)}")
    A(f"s_and_b64 {s(sOk,2)}, {s(sOk,2)}, {s(sOk2,2)}")
    A(f"v_cmp_le_f32 {s(sOk2,2)}, {s(sT0)}, {v(O+24)}")
    A(f"s_and_b64 {s(sOk,2)}, {s(sOk,2)}, {s(sOk2,2)}")
    A(f"v_cmp_ge_f32 {s(sOk2,2)}, {s(sT1)}, {v(O+24)}")
    A(f"s_and_b64 {s(sOk,2)}, {s(sOk,2)}, {s(sOk2,2)}")
    A(f"s_cmp_eq_u64 {s(sOk,2)}, -1")
    if opts.get("force_slow"): A(f"s_cmp_eq_u32 {s(sCnt)}, 12345")
    A(f"s_cbranch_scc1 {name}_fin")
    for t in range(2):
        oo = O + 16 * t; qq = Q + 4 * t; m, tm, al = vT, vT + 1, vT + 2
        A(f"s_lshl_b32 {s(sKo)}, {s(sHead)}, 16")
        A(f"s_add_u32 {s(sVo)}, {s(sKo)}, {WS_V}")
        A(f"s_add_u32 {s(sKo)}, {s(sKo)}, {WS_K}")
        A(f"s_mov_b32 {s(sCnt)}, 64")
        for r in range(16): A(f"v_mov_b32 {v(oo+r)}, 0")
        A(f"v_mov_b32 {v(m)}, {hx(f2u(-3.0e38))}")
        A(f"{name}_slow{t}:")
        A.extend(kv_loads(0, 0))
        A(f"s_add_u32 {s(sKo)}, {s(sKo)}, 1024")
        A(f"s_add_u32 {s(sVo)}, {s(sVo)}, 1024")
        A("s_waitcnt vmcnt(0)")
        A(f"v_mfma_f32_32x32x16_bf16 {v(S,16)}, {v(K,4)}, {v(qq,4)}, 0")
        A(f"v_max3_f32 {v(tm)}, {v(S)}, {v(S+1)}, {v(m)}")
        for r in range(2, 16, 2): A(f"v_max3_f32 {v(tm)}, {v(S+r)}, {v(S+r+1)}, {v(tm)}")
        A(f"v_mov_b32 {v(al)}, {v(tm)}")
        A(f"v_permlane32_swap_b32 {v(tm)}, {v(al)}")
        A(f"v_max_f32 {v(tm)}, {v(tm)}, {v(al)}")
        A(f"v_sub_f32 {v(al)}, {v(m)}, {v(tm)}")
        A(f"v_exp_f32 {v(al)}, {v(al)}")
        A(f"v_mov_b32 {v(m)}, {v(tm)}")
        for r in range(16): A(f"v_mul_f32 {v(oo+r)}, {v(al)}, {v(oo+r)}")
        for r in range(16): A(f"v_sub_f32 {v(S+r)}, {v(S+r)}, {v(m)}")
        for r in range(16): A(f"v_exp_f32 {v(S+r)}, {v(S+r)}")
        for r in range(8): A(f"v_cvt_pk_bf16_f32 {v(P+r)}, {v(S+2*r)}, {v(S+2*r+1)}")
        A(f"v_mfma_f32_32x32x16_bf16 {v(oo,16)}, {v(V,4)}, {v(P,4)}, {v(oo,16)}")
        A(f"v_mfma_f32_32x32x16_bf16 {v(oo,16)}, {v(V+4,4)}, {v(P+4,4)}, {v(oo,16)}")
        A(f"s_sub_u32 {s(sCnt)}, {s(sCnt)}, 1")
        A(f"s_cmp_lg_u32 {s(sCnt)}, 0")
        A(f"s_cbranch_scc1 {name}_slow{t}")
        A("s_nop 15")
    A(f"{name}_fin:")
    A(f"s_lshl_b32 {s(sT0)}, {s(sQt)}, 5")
    A(f"s_add_u32 {s(sT0)}, {s(sT0)}, {s(sHead)}")
    A(f"s_lshl_b32 {s(sT0)}, {s(sT0)}, 10")
    A(f"s_add_u32 {s(sT0)}, {s(sT0)}, {WS_O}")
    A(f"s_add_u32 {s(sT1)}, {s(sT0)}, {32*1024}")
    A(f"v_rcp_f32 {v(O+8)}, {v(O+8)}")
    A(f"v_rcp_f32 {v(O+24)}, {v(O+24)}")
    for t in range(2):
        oo = O + 16 * t
        for r in range(8): A(f"v_mul_f32 {v(oo+r)}, {v(oo+8)}, {v(oo+r)}")
        for r in range(4): A(f"v_cvt_pk_bf16_f32 {v(oo+r)}, {v(oo+2*r)}, {v(oo+2*r+1)}")
        A(f"buffer_store_dwordx4 {v(oo,4)}, {v(vL16)}, {s(sWS,4)}, {s(sT0 if t == 0 else sT1)} offen")
    if ST.on:
        A("s_waitcnt vmcnt(0)")
        A.extend(ST()); A.extend(ST(True)); ST.dump(sWS, sWave, 36)
    A(f"{name}_end:")
    A("s_endpgm")
    A(f"{name}_codeend:")
    loops = [f"{name}_loop", f"{name}_slow0", f"{name}_slow1"]
    n = A.fix_hazards(verbose=opts.get("verbose"), loops=loops)
    e = A.check_waits(loops=loops)
    assert e == 0
    print(f"{name}: {len(A.ins)} lines, {n} nop states inserted")
    return A.text(), kernel_desc(name, NV, 96, NV), f"kernel={name} grid=(256,1,1) block=(256,1,1) lds={4*RG}"
```

```python
from common import *

def gen_k3(name, opts=None):
    opts = opts or {}
    D = opts.get("depth", 12)
    A = Asm()
    sX, sWo, sWd, sWS, sOut, sC = 16, 20, 24, 28, 32, 36
    sWave, sTb, sCg, sT0, sT1, sT2, sL, sOa, sHa, sWoO, sWdO = 40, 41, 42, 43, 44, 45, 46, 47, 48, 49, 50
    vL16, vVo, vaW0, vaW1, vXo = 1, 2, 3, 4, 5
    XR = 8
    ACC = 16
    WF = 80
    ACT = 96
    NV = ACT + 8 * D
    REG = 17408 if D * 2048 < 17408 else D * 2048
    A(f"s_cmp_ge_u32 s2, 256")
    A(f"s_cbranch_scc1 {name}_end")
    ST = Stamps(A, opts.get("stamps"), 2)
    A.extend(ST(True)); A.extend(ST())
    A(f"s_load_dwordx2 s[4:5], s[0:1], 0")
    A(f"s_load_dwordx2 s[6:7], s[0:1], 16")
    A(f"s_load_dwordx4 s[8:11], s[0:1], 48")
    A(f"s_load_dwordx2 s[12:13], s[0:1], 72")
    if opts.get("prefetch", True):
        A(f"s_getpc_b64 {s(sC,2)}")
        A(f"{name}_pc:")
        A(f"s_and_b32 {s(sC+1)}, {s(sC+1)}, 0xffff")
        A(f"s_mov_b32 {s(sC+2)}, {name}_codeend-{name}_pc")
        A(f"s_mov_b32 {s(sC+3)}, 0x00020000")
        A(f"v_lshlrev_b32 v6, 7, v0")
        A(f"buffer_load_dword v7, v6, {s(sC,4)}, 0 offen", "dummy")
    A(f"v_lshrrev_b32 v16, 6, v0")
    A(f"v_and_b32 v17, 63, v0")
    A(f"s_and_b32 {s(sT0)}, s2, 7")
    A(f"v_readfirstlane_b32 {s(sWave)}, v16")
    A(f"s_lshr_b32 {s(sT1)}, s2, 3")
    A(f"s_lshl_b32 {s(sTb)}, {s(sT0)}, 2")
    A(f"s_and_b32 {s(sT0)}, {s(sT1)}, 3")
    A(f"s_add_u32 {s(sTb)}, {s(sTb)}, {s(sT0)}")
    A(f"s_lshr_b32 {s(sCg)}, {s(sT1)}, 2")
    A(f"s_mul_i32 {s(sL)}, {s(sWave)}, {REG}")
    A(f"s_lshl_b32 {s(sOa)}, {s(sTb)}, 16")
    A(f"s_lshl_b32 {s(sT0)}, {s(sWave)}, 13")
    A(f"s_add_u32 {s(sOa)}, {s(sOa)}, {s(sT0)}")
    A(f"s_add_u32 {s(sOa)}, {s(sOa)}, {WS_O}")
    A(f"s_mul_i32 {s(sHa)}, {s(sTb)}, {2*112*1024}")
    A(f"s_mul_i32 {s(sT0)}, {s(sWave)}, {28*1024}")
    A(f"s_add_u32 {s(sHa)}, {s(sHa)}, {s(sT0)}")
    A(f"s_add_u32 {s(sHa)}, {s(sHa)}, {WS_H}")
    A(f"s_lshl_b32 {s(sT1)}, {s(sCg)}, 7")
    A(f"s_lshl_b32 {s(sWoO)}, {s(sWave)}, 17")
    A(f"s_add_u32 {s(sWoO)}, {s(sWoO)}, {s(sT1)}")
    A(f"s_mul_i32 {s(sWdO)}, {s(sWave)}, {28*16*1024}")
    A(f"s_add_u32 {s(sWdO)}, {s(sWdO)}, {s(sT1)}")
    A(f"v_lshlrev_b32 {v(vL16)}, 4, v17")
    A(f"v_bfe_u32 v18, v17, 4, 1")
    A(f"v_lshlrev_b32 v19, 2, v18")
    A(f"v_and_b32 v20, 7, v17")
    A(f"v_xor_b32 v19, v19, v20")
    A(f"v_lshlrev_b32 v19, 4, v19")
    A(f"v_lshrrev_b32 v20, 3, v17")
    A(f"v_lshl_add_u32 {v(vVo)}, v20, 10, v19")
    A(f"v_bfe_u32 v20, v17, 2, 2")
    A(f"v_lshrrev_b32 v21, 5, v17")
    A(f"v_lshl_add_u32 v22, v21, 2, v20")
    A(f"v_lshlrev_b32 v22, 7, v22")
    A(f"v_lshl_add_u32 v22, v18, 5, v22")
    A(f"v_and_b32 v23, 3, v17")
    A(f"v_lshl_add_u32 v22, v23, 3, v22")
    A(f"v_add_u32 v22, {s(sL)}, v22")
    A(f"v_lshrrev_b32 v20, 1, v20")
    A(f"v_lshl_add_u32 {v(vaW0)}, v20, 6, v22")
    A(f"v_xor_b32 v20, 1, v20")
    A(f"v_lshl_add_u32 {v(vaW1)}, v20, 6, v22")
    A(f"v_lshrrev_b32 v20, 3, v0")
    A(f"v_and_b32 v21, 7, v0")
    A(f"v_lshlrev_b32 v21, 4, v21")
    A(f"v_lshl_add_u32 {v(vXo)}, v20, 10, v21")
    A(f"s_lshl_b32 {s(sT2)}, {s(sTb)}, 16")
    A(f"s_add_u32 {s(sT2)}, {s(sT2)}, {s(sT1)}")
    A("s_waitcnt lgkmcnt(0)")
    srd(A, sWS, 12, WS_SIZE)
    srd(A, sWo, 6, 512 * 1024)
    srd(A, sWd, 8, 1792 * 1024)
    srd(A, sX, 4, 2048 * 1024)
    srd(A, sOut, 10, 2048 * 1024)
    steps = [("d", k) for k in range(28)] + [("o", k) for k in range(8)]
    def loads(si):
        kind, k = steps[si]; slot = si % D; tag = f"s{si}"
        wsrd, wo = (sWo, sWoO) if kind == "o" else (sWd, sWdO)
        ab, tstride = (sOa, 32 * 1024) if kind == "o" else (sHa, 112 * 1024)
        return [[f"s_add_u32 m0, {s(sL)}, {slot*2048}", f"s_add_u32 {s(sT0)}, {s(wo)}, {k*16384}",
                 T(f"buffer_load_dwordx4 {v(vVo)}, {s(wsrd,4)}, {s(sT0)} offen lds", tag)],
                [f"s_add_u32 {s(sT0)}, {s(wo)}, {k*16384 + 8192 - 1024}",
                 T(f"buffer_load_dwordx4 {v(vVo)}, {s(wsrd,4)}, {s(sT0)} offen offset:1024 lds", tag)],
                [f"s_add_u32 {s(sT0)}, {s(ab)}, {k*1024}",
                 T(f"buffer_load_dwordx4 {v(ACT+8*slot,4)}, {v(vL16)}, {s(sWS,4)}, {s(sT0)} offen", tag)],
                [f"s_add_u32 {s(sT0)}, {s(ab)}, {k*1024 + tstride}",
                 T(f"buffer_load_dwordx4 {v(ACT+8*slot+4,4)}, {v(vL16)}, {s(sWS,4)}, {s(sT0)} offen", tag)]]
    def reads(si):
        slot = si % D; fs = WF + 8 * (si % 2)
        return [T(f"ds_read_b64_tr_b16 {v(fs + 4*ct + 2*rd, 2)}, {v(vaW0 if ct == 0 else vaW1)} offset:{slot*2048 + rd*1024}", f"f{si}")
                for ct in range(2) for rd in range(2)]
    for si in range(D):
        for g in loads(si): A.extend(g)
    A(f"buffer_load_dwordx4 {v(XR,4)}, {v(vXo)}, {s(sX,4)}, {s(sT2)} offen", "x")
    A(f"s_add_u32 {s(sT1)}, {s(sT2)}, 32768")
    A(f"buffer_load_dwordx4 {v(XR+4,4)}, {v(vXo)}, {s(sX,4)}, {s(sT1)} offen", "x")
    A.extend(ST())
    A.extend([WV("s0")])
    A.extend(ST())
    A.extend(reads(0))
    for si in range(len(steps)):
        slot = si % D; fs = WF + 8 * (si % 2)
        pre = []
        if si + 1 < len(steps): pre = [WV(f"s{si+1}")] + reads(si + 1)
        if si in (12, 24): A.extend(ST())
        A.extend(pre)
        A.extend([WL(f"f{si}")])
        ld = loads(si + D) if si + D < len(steps) else [[], [], [], []]
        k = 0
        for ct in range(2):
            for tt in range(2):
                ac = ACC + 16 * (2 * ct + tt)
                c = "0" if si == 0 else v(ac, 16)
                A(f"v_mfma_f32_32x32x16_bf16 {v(ac,16)}, {v(fs+4*ct,4)}, {v(ACT+8*slot+4*tt,4)}, {c}")
                if k < 2: A.extend(ld[k])
                k += 1
        A.extend(ld[2] + ld[3])
    A.extend(ST())
    A(f"v_and_b32 v6, 31, v0")
    A(f"v_mul_u32_u24 v6, 272, v6")
    A(f"v_bfe_u32 v7, v0, 5, 1")
    A(f"v_lshl_add_u32 v6, v7, 4, v6")
    A(f"v_add_u32 v6, {s(sL)}, v6")
    for ct in range(2):
        for tt in range(2):
            ac = ACC + 16 * (2 * ct + tt)
            for q in range(4):
                A(f"ds_write_b128 v6, {v(ac+4*q,4)} offset:{tt*32*272 + ct*128 + q*32}")
    A(f"v_lshrrev_b32 v6, 3, v0")
    A(f"v_mul_u32_u24 v6, 272, v6")
    A(f"v_and_b32 v7, 7, v0")
    A(f"v_lshl_add_u32 v6, v7, 5, v6")
    A(f"v_add_u32 v7, {2*REG}, v6")
    A("s_waitcnt lgkmcnt(0)")
    A("s_barrier")
    PR = 96
    for j in range(2):
        for w in range(4):
            for hh in range(2):
                A(f"ds_read_b128 {v(PR + 32*j + 8*w + 4*hh, 4)}, v{6 + w//2} offset:{(w%2)*REG + j*32*272 + hh*16}", f"p{j}")
    A.extend([WV("x")])
    A(f"s_mov_b32 {s(sT0)}, 0xffff0000")
    for j in range(2):
        for r in range(4):
            A(f"v_lshlrev_b32 {v(16 + 8*j + 2*r)}, 16, {v(XR + 4*j + r)}")
            A(f"v_and_b32 {v(16 + 8*j + 2*r + 1)}, {s(sT0)}, {v(XR + 4*j + r)}")
    for j in range(2):
        A.extend([WL(f"p{j}")])
        b = PR + 32 * j
        for r in range(8): A(f"v_add_f32 {v(b+r)}, {v(b+r)}, {v(b+8+r)}")
        for r in range(8): A(f"v_add_f32 {v(b+16+r)}, {v(b+16+r)}, {v(b+24+r)}")
        for r in range(8): A(f"v_add_f32 {v(b+r)}, {v(b+r)}, {v(16+8*j+r)}")
        for r in range(8): A(f"v_add_f32 {v(b+r)}, {v(b+r)}, {v(b+16+r)}")
        for r in range(4): A(f"v_cvt_pk_bf16_f32 {v(b+r)}, {v(b+2*r)}, {v(b+2*r+1)}")
        A(f"buffer_store_dwordx4 {v(b,4)}, {v(vXo)}, {s(sOut,4)}, {s(sT2 if j == 0 else sT1)} offen")
    if ST.on:
        A("s_waitcnt vmcnt(0)")
        A.extend(ST()); A.extend(ST(True)); ST.dump(sWS, sWave, 16)
    A(f"{name}_end:")
    A("s_endpgm")
    A(f"{name}_codeend:")
    resolve_waits(A)
    n = A.fix_hazards(verbose=opts.get("verbose"))
    e = A.check_waits()
    assert e == 0
    NVt = max(NV, PR + 64)
    NVt = (NVt + 3) // 4 * 4
    print(f"{name}: {len(A.ins)} lines, {n} nop states inserted")
    return A.text(), kernel_desc(name, NVt, 96, NVt), f"kernel={name} grid=(256,1,1) block=(256,1,1) lds={4*REG}"
```

```python
import build, k1, k2, k3
from asmlib import kernel_desc
def empty(name, grid=1):
    return ("    s_endpgm", kernel_desc(name, 8, 16, 8), f"kernel={name} grid=({grid},1,1) block=(64,1,1) lds=0")
o={}
p=[k1.gen_k1("k1_kernel", o), k2.gen_k2("k2_kernel", o), k3.gen_k3("k3_kernel", o)]
e=empty("e_kernel")
build.build("v_e1.s", p+[e])
build.build("v_e4.s", p+[e,e,e,e])
build.build("v_pre.s", [e]+p)
o={"prefetch":0}
p=[k1.gen_k1("k1_kernel", o), k2.gen_k2("k2_kernel", o), k3.gen_k3("k3_kernel", o)]
build.build("v_nopf.s", p)
```

```python
import build, k1, k2, k3
from asmlib import kernel_desc
o={}
p=[k1.gen_k1("k1_kernel", o), k2.gen_k2("k2_kernel", o), k3.gen_k3("k3_kernel", o)]
build.build("v_a.s", [p[0],p[0],p[1],p[2]])
build.build("v_b.s", [p[0],p[1],p[1],p[2]])
build.build("v_c.s", [p[0],p[1],p[2],p[2]])
build.build("v_d.s", [p[0],p[1],p[2],p[0],p[1],p[2]])
```
